```python
import torch

def _softmax(x, axis=-1):
    return torch.softmax(x, dim=axis)
def _gelu(x):
    return torch.nn.functional.gelu(x, approximate="tanh")
def _silu(x):
    return torch.nn.functional.silu(x)
def _sigmoid(x):
    return torch.sigmoid(x)
def _layernorm(x, axis=-1, eps=1e-5):
    m = x.mean(dim=axis, keepdim=True)
    v = x.var(dim=axis, keepdim=True, unbiased=False)
    return (x - m) / torch.sqrt(v + eps)
def _scatter_add(tgt, idx, src, axis=0):
    return tgt.clone().index_add_(axis, idx, src)
def _segment_sum(src, seg, n):
    out = torch.zeros((n,) + src.shape[1:], dtype=src.dtype)
    return out.index_add_(0, seg, src)
def _pad(x, pw):
    flat = tuple(v for pair in reversed(pw) for v in pair)
    return torch.nn.functional.pad(x, flat)

kernel_name = 'concat_heads__mha_block_cached__mha_block_cached__near_ridge'

def setup_inputs():

    _w = (lambda a: (lambda t: t.to(torch.bfloat16) if t.is_floating_point() else t)(torch.as_tensor(a)))
    def _A_setup():
        B, Sq, D = 8, 128, 640
        H, Sk, Dh = 32, 1024, 192
        return {
            "x": _w((lambda *s: torch.randn(*s, dtype=torch.bfloat16) * 0.8)(B, Sq, D)),
            "k_cache": _w((lambda *s: torch.randn(*s, dtype=torch.bfloat16) * 0.8)(B, H, Sk, Dh)),
            "v_cache": _w((lambda *s: torch.randn(*s, dtype=torch.bfloat16) * 0.05)(B, H, Sk, Dh)),
            "wq": _w((lambda *s: torch.randn(*s, dtype=torch.bfloat16) * 0.8)(D, H * Dh) * (D ** -0.5)),
            "wo": _w((lambda *s: torch.randn(*s, dtype=torch.bfloat16) * 0.05)(H * Dh, D) * ((H * Dh) ** -0.5)),
        }
    _A_in = _A_setup()

    def _B_setup():
        B, Sq, D = 8, 128, 640
        H, Sk, Dh = 32, 1024, 192
        return {
            "x": _w((lambda *s: torch.randn(*s, dtype=torch.bfloat16) * 0.8)(B, Sq, D)),
            "k_cache": _w((lambda *s: torch.randn(*s, dtype=torch.bfloat16) * 0.8)(B, H, Sk, Dh)),
            "v_cache": _w((lambda *s: torch.randn(*s, dtype=torch.bfloat16) * 0.05)(B, H, Sk, Dh)),
            "wq": _w((lambda *s: torch.randn(*s, dtype=torch.bfloat16) * 0.8)(D, H * Dh) * (D ** -0.5)),
            "wo": _w((lambda *s: torch.randn(*s, dtype=torch.bfloat16) * 0.05)(H * Dh, D) * ((H * Dh) ** -0.5)),
        }
    _B_in = _B_setup()

    return {
        "A_x": _A_in["x"],
        "A_k_cache": _A_in["k_cache"],
        "A_v_cache": _A_in["v_cache"],
        "A_wq": _A_in["wq"],
        "A_wo": _A_in["wo"],
        "B_x": _B_in["x"],
        "B_k_cache": _B_in["k_cache"],
        "B_v_cache": _B_in["v_cache"],
        "B_wq": _B_in["wq"],
        "B_wo": _B_in["wo"],
    }

def reference(A_x, A_k_cache, A_v_cache, A_wq, A_wo, B_x, B_k_cache, B_v_cache, B_wq, B_wo):
    def _A_ref(x, k_cache, v_cache, wq, wo):
        B, Sq, D = x.shape
        H, Dh = 32, 192
        q = (lambda x, *d: x.permute(*d))((x @ wq).reshape(B, Sq, H, Dh), 0, 2, 1, 3)
        scores = torch.einsum("bhqd,bhkd->bhqk", q, k_cache) * (Dh ** -0.5)
        p = _softmax(scores, axis=-1)
        o = torch.einsum("bhqk,bhkd->bhqd", p, v_cache)
        return (lambda x, *d: x.permute(*d))(o, 0, 2, 1, 3).reshape(B, Sq, H * Dh) @ wo

    def _B_ref(x, k_cache, v_cache, wq, wo):
        B, Sq, D = x.shape
        H, Dh = 32, 192
        q = (lambda x, *d: x.permute(*d))((x @ wq).reshape(B, Sq, H, Dh), 0, 2, 1, 3)
        scores = torch.einsum("bhqd,bhkd->bhqk", q, k_cache) * (Dh ** -0.5)
        p = _softmax(scores, axis=-1)
        o = torch.einsum("bhqk,bhkd->bhqd", p, v_cache)
        return (lambda x, *d: x.permute(*d))(o, 0, 2, 1, 3).reshape(B, Sq, H * Dh) @ wo

    a = _A_ref(A_x, A_k_cache, A_v_cache, A_wq, A_wo)
    b = _B_ref(B_x, B_k_cache, B_v_cache, B_wq, B_wo)
    return torch.concatenate([a, b], axis=-1)
```

```python
class Asm:
    def __init__(self):
        self.lines = []
    def __call__(self, s):
        for l in s.strip('\n').split('\n'):
            self.lines.append('    ' + l.strip() if not l.strip().endswith(':') else l.strip())
    def raw(self, s):
        self.lines.append(s)
    def text(self):
        return '\n'.join(self.lines) + '\n'

def vr(a, n=1):
    return f'v{a}' if n == 1 else f'v[{a}:{a+n-1}]'
def sr(a, n=1):
    return f's{a}' if n == 1 else f's[{a}:{a+n-1}]'

def kernel_header(a, name):
    a.raw(f'.globl {name}')
    a.raw('.p2align 8')
    a.raw(f'.type {name},@function')
    a.raw(f'{name}:')

def kernel_desc(name, vgpr, sgpr=102, accum=None):
    if accum is None:
        accum = (vgpr + 3) // 4 * 4
    return f'''.p2align 6
.amdhsa_kernel {name}
  .amdhsa_next_free_vgpr {vgpr}
  .amdhsa_next_free_sgpr {sgpr}
  .amdhsa_accum_offset {accum}
  .amdhsa_group_segment_fixed_size 0
  .amdhsa_kernarg_size 104
  .amdhsa_user_sgpr_count 2
  .amdhsa_user_sgpr_kernarg_segment_ptr 1
  .amdhsa_system_sgpr_workgroup_id_x 1
.end_amdhsa_kernel
'''

def srd(a, d, base_lo, base_hi, nrec):
    a(f's_mov_b32 s{d}, s{base_lo}')
    a(f's_and_b32 s{d+1}, s{base_hi}, 0xffff')
    a(f's_mov_b32 s{d+2}, {nrec}')
    a(f's_mov_b32 s{d+3}, 0x00020000')
```

```python
from common import *
import math

SLOT = 24576
S_K, S_V, S_W, S_X, S_O = 8, 12, 16, 20, 24
S_WV = 28
S_M0B = 29
S_RS = 30
S_KOFF = 31
S_VOFF = 32
S_T = 33
S_C = 34
S_TMP = 35
S_TMP2 = 36
S_W2 = 37
S_OOFF = 38
S_DBG = 40
V_KA, V_KB, V_VS, V_WS, V_XS = 1, 2, 3, 4, 5
V_K0 = 6
V_V0 = 7
V_KR = 8
V_VR = 12
V_M, V_L = 14, 15
V_Q = 16
V_S = 64
V_P = 96
V_F = 112
V_T = 152
V_O = 160
NFB = 10

def gen_k1(a, name, opt):
    kv_flags = opt.get('kv_flags', '')
    stamps = opt.get('stamps', False)
    kernel_header(a, name)
    a('s_cmp_ge_u32 s2, 512')
    a('s_cbranch_scc1 L_k1_end')
    a('s_and_b32 s3, s2, 7')
    a('s_lshr_b32 s4, s2, 3')
    a('s_lshr_b32 s5, s3, 2')
    a('s_and_b32 s3, s3, 3')
    a('s_lshl_b32 s3, s3, 3')
    a('s_and_b32 s6, s4, 7')
    a('s_add_u32 s6, s6, s3')
    a('s_lshr_b32 s7, s4, 3')
    a('s_mul_i32 s3, s5, 40')
    a('s_add_u32 s0, s0, s3')
    a('s_addc_u32 s1, s1, 0')
    a('s_load_dwordx4 s[44:47], s[0:1], 0')
    a('s_load_dwordx4 s[48:51], s[0:1], 16')
    a('s_sub_u32 s0, s0, s3')
    a('s_subb_u32 s1, s1, 0')
    a('s_load_dwordx4 s[52:55], s[0:1], 88')
    if stamps:
        a('s_memtime s[60:61]')
    a('v_lshrrev_b32 v8, 6, v0')
    a('v_and_b32 v0, 63, v0')
    a(f'v_readfirstlane_b32 s{S_WV}, v8')
    a('v_lshrrev_b32 v8, 3, v0')
    a('v_and_b32 v9, 7, v0')
    a('v_lshrrev_b32 v10, 4, v0')
    a(f's_mul_i32 s{S_M0B}, s{S_WV}, 6144')
    a('v_mul_u32_u24 v11, 384, v8')
    a(f'v_add_u32 v11, s{S_M0B}, v11')
    a('v_xor_b32 v12, v9, v10')
    a(f'v_lshl_add_u32 v{V_KA}, v12, 4, v11')
    a('v_xor_b32 v12, 4, v12')
    a(f'v_lshl_add_u32 v{V_KB}, v12, 4, v11')
    a(f'v_add_u32 v{V_KB}, 3072, v{V_KB}')
    a('v_and_b32 v12, 1, v10')
    a('v_lshlrev_b32 v12, 2, v12')
    a('v_xor_b32 v12, v9, v12')
    a(f'v_lshl_add_u32 v{V_VS}, v12, 4, v11')
    a(f's_lshl_b32 s{S_TMP}, s{S_WV}, 4')
    a(f'v_add_u32 v13, s{S_TMP}, v8')
    a('v_mul_u32_u24 v13, 12288, v13')
    a(f'v_lshl_add_u32 v{V_WS}, v12, 4, v13')
    a('v_and_b32 v8, 31, v0')
    a('v_lshrrev_b32 v9, 5, v0')
    a(f's_lshl_b32 s{S_TMP}, s{S_WV}, 5')
    a(f'v_add_u32 v10, s{S_TMP}, v8')
    a('v_mul_u32_u24 v10, 1280, v10')
    a(f'v_lshl_add_u32 v{V_XS}, v9, 4, v10')
    a('v_lshrrev_b32 v10, 3, v8')
    a('v_mul_u32_u24 v10, 3072, v10')
    a('v_and_b32 v11, 7, v8')
    a('v_lshl_add_u32 v10, v11, 7, v10')
    a('v_bfe_u32 v11, v8, 1, 3')
    a('v_xor_b32 v11, v11, v9')
    a(f'v_lshl_add_u32 v{V_K0}, v11, 4, v10')
    a('v_bfe_u32 v10, v0, 2, 2')
    a('v_lshlrev_b32 v11, 7, v10')
    a('v_lshrrev_b32 v10, 1, v10')
    a('v_lshl_add_u32 v11, v10, 6, v11')
    a('v_bfe_u32 v10, v0, 4, 1')
    a('v_lshl_add_u32 v11, v10, 5, v11')
    a('v_and_b32 v10, 1, v0')
    a('v_lshl_add_u32 v11, v10, 4, v11')
    a('v_bfe_u32 v10, v0, 1, 1')
    a('v_lshl_add_u32 v11, v10, 3, v11')
    a(f'v_lshl_add_u32 v{V_V0}, v9, 9, v11')
    a('v_mul_u32_u24 v10, 3072, v9')
    a(f'v_add_u32 v{V_VR}, v10, v11')
    a(f'v_xor_b32 v{V_VR+1}, 64, v{V_VR}')
    a('s_waitcnt lgkmcnt(0)')
    a('s_lshl_b32 s3, s7, 5')
    a('s_add_u32 s3, s3, s6')
    a('s_mul_i32 s3, s3, 393216')
    a('s_add_u32 s46, s46, s3')
    a('s_addc_u32 s47, s47, 0')
    a('s_add_u32 s48, s48, s3')
    a('s_addc_u32 s49, s49, 0')
    srd(a, S_K, 46, 47, 393216)
    srd(a, S_V, 48, 49, 393216)
    a('s_mul_i32 s3, s6, 384')
    a('s_add_u32 s50, s50, s3')
    a('s_addc_u32 s51, s51, 0')
    a(f's_sub_u32 s4, {640*12288}, s3')
    srd(a, S_W, 50, 51, 's4')
    a('s_mul_i32 s3, s7, 163840')
    a('s_add_u32 s44, s44, s3')
    a('s_addc_u32 s45, s45, 0')
    srd(a, S_X, 44, 45, 163840)
    srd(a, S_O, 54, 55, 2*32*384*1024)
    a('s_lshl_b32 s3, s5, 5')
    a('s_lshl_b32 s4, s7, 2')
    a('s_add_u32 s3, s3, s4')
    a(f's_add_u32 s3, s3, s{S_WV}')
    a('s_mul_i32 s3, s3, 384')
    a('s_mul_i32 s4, s6, 12')
    a('s_add_u32 s3, s3, s4')
    a(f's_lshl_b32 s{S_OOFF}, s3, 10')
    if stamps:
        srd(a, S_DBG, 52, 53, 256)
    c = (192 ** -0.5) * math.log2(math.e)
    import struct
    a(f's_mov_b32 s{S_C}, 0x{struct.unpack("<I", struct.pack("<f", c))[0]:08x}')

    def issue_W(c):
        slot = (c % 3) * SLOT
        a(f's_mov_b32 s{S_TMP}, {c*64*12288}')
        a(f's_mov_b32 s{S_W2}, {c*64*12288 + 8*12288}')
        for j in range(6):
            cb = j % 3
            a(f's_add_u32 m0, s{S_M0B}, {slot + j*1024 - cb*128}')
            a('s_nop 0')
            so = S_TMP if j < 3 else S_W2
            a(f'buffer_load_dwordx4 v{V_WS}, s[{S_W}:{S_W+3}], s{so} offen offset:{cb*128} lds')
        xb = V_Q + (c % 3) * 16
        for s in range(4):
            a(f'buffer_load_dwordx4 {vr(xb+4*s,4)}, v{V_XS}, s[{S_X}:{S_X+3}], 0 offen offset:{c*128 + s*32}')

    def issue_K(slot):
        if slot is None:
            a(f's_add_u32 s{S_TMP}, s{S_M0B}, s{S_RS}')
        else:
            a(f's_add_u32 s{S_TMP}, s{S_M0B}, {slot}')
        for j in range(6):
            cb = j % 3
            a(f's_add_u32 m0, s{S_TMP}, {j*1024 - cb*128}')
            a('s_nop 0')
            v = V_KA if j < 3 else V_KB
            a(f'buffer_load_dwordx4 v{v}, s[{S_K}:{S_K+3}], s{S_KOFF} offen offset:{cb*128} lds {kv_flags}')
        a(f's_add_u32 s{S_KOFF}, s{S_KOFF}, {SLOT}')

    def issue_V(slot):
        if slot is None:
            a(f's_add_u32 s{S_TMP}, s{S_M0B}, s{S_RS}')
        else:
            a(f's_add_u32 s{S_TMP}, s{S_M0B}, {slot}')
        for j in range(6):
            cb = j % 3
            off = cb*128 + (3072 if j >= 3 else 0)
            a(f's_add_u32 m0, s{S_TMP}, {j*1024 - off}')
            a('s_nop 0')
            a(f'buffer_load_dwordx4 v{V_VS}, s[{S_V}:{S_V+3}], s{S_VOFF} offen offset:{off} lds {kv_flags}')
        a(f's_add_u32 s{S_VOFF}, s{S_VOFF}, {SLOT}')

    def next_slot():
        a(f's_add_u32 s{S_RS}, s{S_RS}, {SLOT}')
        a(f's_cmp_eq_u32 s{S_RS}, {3*SLOT}')
        a(f's_cselect_b32 s{S_RS}, 0, s{S_RS}')

    def pipeline(n, rd, per, mm, depth):
        for i in range(min(depth, n)):
            rd(i, i % NFB)
        for i in range(n):
            issued = min(n, i + depth)
            a(f's_waitcnt lgkmcnt({(issued - i - 1) * per})')
            mm(i, i % NFB)
            if i + depth < n:
                rd(i + depth, (i + depth) % NFB)

    a(f's_mov_b32 s{S_KOFF}, 0')
    a(f's_mov_b32 s{S_VOFF}, 0')
    for c in range(3):
        issue_W(c)
    for i in range(96):
        a(f'v_mov_b32 v{V_O+i}, 0')
    for c in range(10):
        nxt = {8: 16, 9: 12}.get(c, 20)
        a(f's_waitcnt vmcnt({nxt})')
        a('s_barrier')
        slot = (c % 3) * SLOT
        xb = V_Q + (c % 3) * 16
        def rd(i, buf, slot=slot):
            s, j = i // 6, i % 6
            for t in range(2):
                off = slot + s*6144 + t*512 + (j//2)*1024
                base = V_VR + (j % 2)
                if off > 65535:
                    raise Exception('off')
                a(f'ds_read_b64_tr_b16 {vr(V_F+4*buf+2*t,2)}, v{base} offset:{off}')
        def mm(i, buf, xb=xb):
            s, j = i // 6, i % 6
            a(f'v_mfma_f32_32x32x16_bf16 {vr(V_O+16*j,16)}, {vr(V_F+4*buf,4)}, {vr(xb+4*s,4)}, {vr(V_O+16*j,16)}')
        if slot + 3*6144 + 512 + 2048 > 65535:
            a(f'v_add_u32 v{V_VR}, {slot}, v{V_VR}')
            a(f'v_add_u32 v{V_VR+1}, {slot}, v{V_VR+1}')
            pipeline(24, lambda i, b: rd(i, b, 0), 2, mm, 7)
            a(f'v_subrev_u32 v{V_VR}, {slot}, v{V_VR}')
            a(f'v_subrev_u32 v{V_VR+1}, {slot}, v{V_VR+1}')
        else:
            pipeline(24, rd, 2, mm, 7)
        a('s_barrier')
        if c + 3 < 10:
            issue_W(c + 3)
        elif c == 7:
            issue_K(slot)
        elif c == 8:
            issue_V(slot)
        else:
            issue_K(slot)
    a('s_nop 7')
    a('s_nop 3')
    for i in range(48):
        a(f'v_cvt_pk_bf16_f32 v{V_Q+i}, v{V_O+2*i}, v{V_O+2*i+1}')
    for i in range(96):
        a(f'v_mov_b32 v{V_O+i}, 0')
    a(f'v_mov_b32 v{V_M}, 0xff800000')
    a(f'v_mov_b32 v{V_L}, 0')
    a(f's_mov_b32 s{S_RS}, {(10 % 3) * SLOT}')
    a(f's_mov_b32 s{S_T}, 0')
    if stamps:
        a('s_memtime s[62:63]')
    a('L_k1_loop:')
    a(f'v_add_u32 v{V_KR}, s{S_RS}, v{V_K0}')
    for j in range(1, 4):
        a(f'v_xor_b32 v{V_KR+j}, {32*j}, v{V_KR}')
    a('s_waitcnt vmcnt(12)')
    a('s_barrier')
    def rdk(i, buf):
        kb, s = i // 12, i % 12
        a(f'ds_read_b128 {vr(V_F+4*buf,4)}, v{V_KR + s % 4} offset:{kb*12288 + (s//4)*1024}')
    def mmk(i, buf):
        kb, s = i // 12, i % 12
        cin = '0' if s == 0 else vr(V_S+16*kb, 16)
        a(f'v_mfma_f32_32x32x16_bf16 {vr(V_S+16*kb,16)}, {vr(V_F+4*buf,4)}, {vr(V_Q+4*s,4)}, {cin}')
    pipeline(24, rdk, 1, mmk, 9)
    a('s_barrier')
    issue_V(None)
    next_slot()
    a(f'v_add_u32 v{V_VR}, s{S_RS}, v{V_V0}')
    a(f'v_xor_b32 v{V_VR+1}, 64, v{V_VR}')
    T = V_T
    a(f'v_max3_f32 v{T}, v{V_S}, v{V_S+1}, v{V_S+2}')
    a(f'v_max3_f32 v{T+1}, v{V_S+3}, v{V_S+4}, v{V_S+5}')
    for k in range(6, 30, 4):
        a(f'v_max3_f32 v{T}, v{T}, v{V_S+k}, v{V_S+k+1}')
        a(f'v_max3_f32 v{T+1}, v{T+1}, v{V_S+k+2}, v{V_S+k+3}')
    a(f'v_max3_f32 v{T}, v{T}, v{V_S+30}, v{V_S+31}')
    a(f'v_max3_f32 v{T}, v{T}, v{T+1}, v{V_M}')
    a(f'v_mov_b32 v{T+1}, v{T}')
    a('s_nop 1')
    a(f'v_permlane32_swap_b32 v{T}, v{T+1}')
    a('s_nop 1')
    a(f'v_max_f32 v{T}, v{T}, v{T+1}')
    a(f'v_sub_f32 v{T+1}, v{V_M}, v{T}')
    a(f'v_mul_f32 v{T+1}, s{S_C}, v{T+1}')
    a(f'v_exp_f32 v{T+1}, v{T+1}')
    a(f'v_mov_b32 v{V_M}, v{T}')
    a(f'v_mul_f32 v{T}, s{S_C}, v{T}')
    a(f'v_mul_f32 v{V_L}, v{V_L}, v{T+1}')
    for k in range(32):
        a(f'v_fma_f32 v{V_S+k}, v{V_S+k}, s{S_C}, -v{T}')
    for k in range(32):
        a(f'v_exp_f32 v{V_S+k}, v{V_S+k}')
    for k in range(96):
        a(f'v_mul_f32 v{V_O+k}, v{V_O+k}, v{T+1}')
    a(f'v_add_f32 v{T+2}, v{V_S}, v{V_S+1}')
    a(f'v_add_f32 v{T+3}, v{V_S+2}, v{V_S+3}')
    for k in range(4, 32, 2):
        a(f'v_add_f32 v{T+2}, v{T+2}, v{V_S+k}')
        a(f'v_add_f32 v{T+3}, v{T+3}, v{V_S+k+1}')
    for k in range(16):
        a(f'v_cvt_pk_bf16_f32 v{V_P+k}, v{V_S+2*k}, v{V_S+2*k+1}')
    a(f'v_add_f32 v{V_L}, v{V_L}, v{T+2}')
    a(f'v_add_f32 v{V_L}, v{V_L}, v{T+3}')
    a('s_waitcnt vmcnt(12)')
    a('s_barrier')
    def rdv(i, buf):
        ks, j = i // 6, i % 6
        for t in range(2):
            a(f'ds_read_b64_tr_b16 {vr(V_F+4*buf+2*t,2)}, v{V_VR + j % 2} offset:{(2*ks+t)*3072 + (j//2)*1024}')
    def mmv(i, buf):
        ks, j = i // 6, i % 6
        a(f'v_mfma_f32_32x32x16_bf16 {vr(V_O+16*j,16)}, {vr(V_F+4*buf,4)}, {vr(V_P+4*ks,4)}, {vr(V_O+16*j,16)}')
    pipeline(24, rdv, 2, mmv, 7)
    a('s_barrier')
    issue_K(None)
    next_slot()
    a(f's_add_u32 s{S_T}, s{S_T}, 1')
    a(f's_cmp_lt_u32 s{S_T}, 16')
    a('s_cbranch_scc1 L_k1_loop')
    if stamps:
        a('s_memtime s[64:65]')
    a(f'v_mov_b32 v{T}, v{V_L}')
    a('s_nop 1')
    a(f'v_permlane32_swap_b32 v{V_L}, v{T}')
    a('s_nop 1')
    a(f'v_add_f32 v{V_L}, v{V_L}, v{T}')
    a(f'v_rcp_f32 v{V_L}, v{V_L}')
    a(f'v_lshlrev_b32 v{T}, 4, v0')
    a('s_nop 7')
    for f in range(12):
        for k in range(8):
            a(f'v_mul_f32 v{V_O+8*f+k}, v{V_O+8*f+k}, v{V_L}')
        for k in range(4):
            a(f'v_cvt_pk_bf16_f32 v{V_Q+4*f+k}, v{V_O+8*f+2*k}, v{V_O+8*f+2*k+1}')
        if f % 4 == 0 and f > 0:
            a(f's_add_u32 s{S_OOFF}, s{S_OOFF}, 4096')
        a(f'buffer_store_dwordx4 {vr(V_Q+4*f,4)}, v{T}, s[{S_O}:{S_O+3}], s{S_OOFF} offen offset:{(f%4)*1024}')
    if stamps:
        a('s_waitcnt vmcnt(0)')
        a('s_memtime s[66:67]')
        a('s_waitcnt lgkmcnt(0)')
        a('s_sub_u32 s62, s62, s60')
        a('s_sub_u32 s64, s64, s60')
        a('s_sub_u32 s66, s66, s60')
        a('s_lshr_b32 s3, s2, 7')
        a('s_and_b32 s4, s2, 127')
        a('s_cmp_lg_u32 s4, 5')
        a('s_cbranch_scc1 L_k1_end')
        a('s_lshl_b32 s3, s3, 4')
        a('v_mov_b32 v1, s3')
        a('v_mov_b32 v4, s62')
        a('v_mov_b32 v5, s64')
        a('v_mov_b32 v6, s66')
        a('v_mov_b32 v7, s60')
        a(f'buffer_store_dwordx4 v[4:7], v1, s[{S_DBG}:{S_DBG+3}], 0 offen')
    a('L_k1_end:')
    a('s_endpgm')
```

```python
from common import *

OBYTES = 2*32*384*1024
PART_OFF = OBYTES
PART_TILE = 4*5*4*1024
CH = 20480
NS = 6
NCH = 24

def gen_k2(a, name, opt):
    S_WO, S_O, S_P = 8, 12, 16
    S_WV, S_M0B, S_TMP, S_OOFF, S_WOFF, S_RS, S_WS, S_T, S_HALF = 20, 21, 22, 23, 24, 25, 26, 27, 28
    V_SRC = 1
    V_RD = 4
    V_L16 = 6
    V_B = 16
    NB = NS
    V_F = V_B + NB*8
    V_ACC = 112
    NFB = 10
    kernel_header(a, name)
    a('s_cmp_ge_u32 s2, 256')
    a('s_cbranch_scc1 L_k2_end')
    a('s_and_b32 s3, s2, 7')
    a('s_lshr_b32 s4, s2, 3')
    a('s_lshr_b32 s5, s3, 2')
    a('s_and_b32 s6, s3, 3')
    a('s_lshr_b32 s7, s4, 2')
    a('s_and_b32 s4, s4, 3')
    a('s_mul_i32 s3, s5, 40')
    a('s_add_u32 s0, s0, s3')
    a('s_addc_u32 s1, s1, 0')
    a('s_load_dwordx2 s[30:31], s[0:1], 32')
    a('s_sub_u32 s0, s0, s3')
    a('s_subb_u32 s1, s1, 0')
    a('s_load_dwordx2 s[32:33], s[0:1], 96')
    a('v_lshrrev_b32 v8, 6, v0')
    a('v_and_b32 v0, 63, v0')
    a(f'v_readfirstlane_b32 s{S_WV}, v8')
    a(f'v_lshlrev_b32 v{V_L16}, 4, v0')
    a('s_nop 2')
    for i in range(3):
        a(f's_add_u32 s{S_TMP}, s{S_WV}, {8*i}')
        a(f's_lshl_b32 s{S_TMP}, s{S_TMP}, 6')
        a(f'v_add_u32 v8, s{S_TMP}, v0')
        a('v_mul_u32_u24 v9, 3277, v8')
        a('v_lshrrev_b32 v9, 16, v9')
        a('v_mul_u32_u24 v10, 20, v9')
        a('v_sub_u32 v10, v8, v10')
        a('v_mul_u32_u24 v9, 1280, v9')
        a(f'v_lshl_add_u32 v{V_SRC+i}, v10, 4, v9')
    a(f's_lshl_b32 s{S_M0B}, s{S_WV}, 10')
    a(f's_lshr_b32 s{S_HALF}, s{S_WV}, 2')
    a('v_lshrrev_b32 v8, 5, v0')
    a('v_bfe_u32 v9, v0, 2, 2')
    a('v_lshl_add_u32 v8, v8, 3, v9')
    a(f's_lshl_b32 s{S_TMP}, s{S_HALF}, 5')
    a(f'v_add_u32 v8, s{S_TMP}, v8')
    a('v_mul_u32_u24 v8, 320, v8')
    a('v_bfe_u32 v9, v0, 4, 1')
    a('v_lshl_add_u32 v8, v9, 5, v8')
    a('v_and_b32 v9, 1, v0')
    a('v_lshl_add_u32 v8, v9, 4, v8')
    a('v_bfe_u32 v9, v0, 1, 1')
    a(f'v_lshl_add_u32 v{V_RD}, v9, 3, v8')
    a('s_waitcnt lgkmcnt(0)')
    a(f's_mul_i32 s3, s6, {1536*1280}')
    a('s_mul_i32 s34, s4, 320')
    a('s_add_u32 s3, s3, s34')
    a('s_add_u32 s30, s30, s3')
    a('s_addc_u32 s31, s31, 0')
    a(f's_sub_u32 s35, {1536*1280}, s34')
    srd(a, S_WO, 30, 31, 's35')
    srd(a, S_O, 32, 33, OBYTES)
    a(f's_add_u32 s32, s32, {PART_OFF}')
    a('s_addc_u32 s33, s33, 0')
    srd(a, S_P, 32, 33, 256*PART_TILE)
    a('s_lshl_b32 s3, s5, 5')
    a('s_lshl_b32 s34, s7, 2')
    a('s_add_u32 s3, s3, s34')
    a(f's_and_b32 s34, s{S_WV}, 3')
    a('s_add_u32 s3, s3, s34')
    a('s_mul_i32 s3, s3, 384')
    a('s_mul_i32 s34, s6, 96')
    a('s_add_u32 s3, s3, s34')
    a(f's_lshl_b32 s34, s{S_HALF}, 1')
    a('s_add_u32 s3, s3, s34')
    a(f's_lshl_b32 s{S_OOFF}, s3, 10')
    a('s_lshl_b32 s3, s6, 1')
    a('s_add_u32 s3, s3, s5')
    a('s_lshl_b32 s3, s3, 3')
    a('s_add_u32 s3, s3, s7')
    a('s_lshl_b32 s3, s3, 2')
    a('s_add_u32 s3, s3, s4')
    a(f's_mul_i32 s36, s3, {PART_TILE}')
    a(f's_and_b32 s34, s{S_WV}, 3')
    a('s_mul_i32 s34, s34, 20480')
    a('s_add_u32 s36, s36, s34')
    a(f's_mov_b32 s{S_WOFF}, 0')
    a(f's_mov_b32 s39, {NS*CH - 4096}')
    a(f's_cmp_lt_u32 s{S_WV}, 4')
    a(f's_cselect_b32 s37, 0, 0x7f000000')
    a(f'v_add_u32 v{V_SRC+2}, s37, v{V_SRC+2}')

    def issue(c):
        slot = (c % NS)
        for i in range(3):
            a(f's_add_u32 m0, s{S_M0B}, {slot*CH + i*8192}')
            a('s_nop 0')
            a(f'buffer_load_dwordx4 v{V_SRC+i}, s[{S_WO}:{S_WO+3}], s{S_WOFF} offen lds')
        for s in range(2):
            a(f'buffer_load_dwordx4 {vr(V_B+slot*8+4*s,4)}, v{V_L16}, s[{S_O}:{S_O+3}], s{S_OOFF} offen offset:{s*1024}')
        a(f's_add_u32 s{S_WOFF}, s{S_WOFF}, {64*1280}')
        a(f's_add_u32 s{S_OOFF}, s{S_OOFF}, 4096')
    DEPTH = NS - 1
    for c in range(DEPTH):
        issue2(a, c, locals())
    for i in range(80):
        a(f'v_mov_b32 v{V_ACC+i}, 0')
    for c in range(NCH):
        later = min(NCH - 1, c + DEPTH - 1) - c
        a(f's_waitcnt vmcnt({later*5})')
        a('s_barrier')
        if c + DEPTH < NCH:
            issue2(a, c + DEPTH, locals())
        slot = c % NS
        base = slot * CH
        hi = base >= 40960*1
        if base + 31*320 + 320 > 65535 - 0 or True:
            a(f'v_add_u32 v{V_RD+1}, {base}, v{V_RD}')
        n = 10
        depth = 6
        def rd(i, buf):
            s, j = i // 5, i % 5
            for t in range(2):
                a(f'ds_read_b64_tr_b16 {vr(V_F+4*buf+2*t,2)}, v{V_RD+1} offset:{(16*s+4*t)*320 + j*64}')
        for i in range(depth):
            rd(i, i)
        for i in range(n):
            issued = min(n, i + depth)
            a(f's_waitcnt lgkmcnt({(issued - i - 1) * 2})')
            s, j = i // 5, i % 5
            a(f'v_mfma_f32_32x32x16_bf16 {vr(V_ACC+16*j,16)}, {vr(V_F+4*i,4)}, {vr(V_B+slot*8+4*s,4)}, {vr(V_ACC+16*j,16)}')
            if i + depth < n:
                rd(i + depth, i + depth)
    a('s_barrier')
    a(f's_and_b32 s34, s{S_WV}, 3')
    a('s_mul_i32 s34, s34, 20480')
    a(f'v_add_u32 v8, s34, v{V_L16}')
    a('s_nop 7')
    a('s_nop 3')
    a(f's_cmp_eq_u32 s{S_HALF}, 0')
    a('s_cbranch_scc1 L_k2_lo')
    for q in range(20):
        a(f'ds_write_b128 v8, {vr(V_ACC+4*q,4)} offset:{q*1024}')
    a('s_waitcnt lgkmcnt(0)')
    a('s_barrier')
    a('s_branch L_k2_end')
    a('L_k2_lo:')
    a('s_barrier')
    for q in range(20):
        a(f'ds_read_b128 {vr(V_B+4*q,4)}, v8 offset:{q*1024}')
    for q in range(20):
        a(f's_waitcnt lgkmcnt({min(15, 19-q)})')
        for k in range(4):
            a(f'v_add_f32 v{V_ACC+4*q+k}, v{V_ACC+4*q+k}, v{V_B+4*q+k}')
        if q % 4 == 0 and q > 0:
            a('s_add_u32 s36, s36, 4096')
        a(f'buffer_store_dwordx4 {vr(V_ACC+4*q,4)}, v{V_L16}, s[{S_P}:{S_P+3}], s36 offen offset:{(q%4)*1024}')
    a('L_k2_end:')
    a('s_endpgm')

def issue2(a, c, L):
    S_M0B, S_WO, S_WOFF, S_O, S_OOFF, S_WV = L['S_M0B'], L['S_WO'], L['S_WOFF'], L['S_O'], L['S_OOFF'], L['S_WV']
    V_SRC, V_B, V_L16 = L['V_SRC'], L['V_B'], L['V_L16']
    slot = c % NS
    for i in range(3):
        if i < 2:
            a(f's_add_u32 m0, s{S_M0B}, {slot*CH + i*8192}')
        else:
            a(f's_cmp_lt_u32 s{S_WV}, 4')
            a(f's_cselect_b32 s38, {slot*CH + 16384}, s39')
            a(f's_add_u32 m0, s{S_M0B}, s38')
        a('s_nop 0')
        a(f'buffer_load_dwordx4 v{V_SRC+i}, s[{S_WO}:{S_WO+3}], s{S_WOFF} offen lds')
    for s in range(2):
        a(f'buffer_load_dwordx4 {vr(V_B+slot*8+4*s,4)}, v{V_L16}, s[{S_O}:{S_O+3}], s{S_OOFF} offen offset:{s*1024}')
    a(f's_add_u32 s{S_WOFF}, s{S_WOFF}, {64*1280}')
    a(f's_add_u32 s{S_OOFF}, s{S_OOFF}, 4096')

def gen_k3(a, name, opt):
    kernel_header(a, name)
    a('s_cmp_ge_u32 s2, 640')
    a('s_cbranch_scc1 L_k3_end')
    a('s_load_dwordx2 s[4:5], s[0:1], 80')
    a('s_load_dwordx2 s[6:7], s[0:1], 96')
    a('v_lshrrev_b32 v8, 6, v0')
    a('v_and_b32 v0, 63, v0')
    a('v_readfirstlane_b32 s3, v8')
    a('v_lshlrev_b32 v1, 4, v0')
    a('s_lshl_b32 s20, s2, 2')
    a('s_nop 2')
    a('s_add_u32 s20, s20, s3')
    a('s_lshl_b32 s21, s20, 11')
    a('s_waitcnt lgkmcnt(0)')
    a(f's_add_u32 s6, s6, {PART_OFF}')
    a('s_addc_u32 s7, s7, 0')
    srd(a, 8, 6, 7, 256*PART_TILE)
    srd(a, 12, 4, 5, 8*128*1280*2)
    for kq in range(4):
        a(f'buffer_load_dwordx4 {vr(8+8*kq,4)}, v1, s[8:11], s21 offen')
        a(f'buffer_load_dwordx4 {vr(12+8*kq,4)}, v1, s[8:11], s21 offen offset:1024')
        a(f's_add_u32 s21, s21, {64*PART_TILE}')
    a('s_and_b32 s22, s20, 1')
    a('s_lshr_b32 s23, s20, 1')
    a('s_mul_i32 s24, s23, 13108')
    a('s_lshr_b32 s24, s24, 16')
    a('s_mul_i32 s25, s24, 5')
    a('s_sub_u32 s23, s23, s25')
    a('s_and_b32 s25, s24, 3')
    a('s_lshr_b32 s24, s24, 2')
    a('s_and_b32 s26, s24, 3')
    a('s_lshr_b32 s24, s24, 2')
    a('s_and_b32 s27, s24, 7')
    a('s_lshr_b32 s24, s24, 3')
    a('s_lshl_b32 s27, s27, 2')
    a('s_add_u32 s27, s27, s25')
    a(f's_mul_i32 s27, s27, {32*2560}')
    a('s_mul_i32 s24, s24, 1280')
    a('s_add_u32 s27, s27, s24')
    a('s_mul_i32 s26, s26, 320')
    a('s_add_u32 s27, s27, s26')
    a('s_lshl_b32 s23, s23, 6')
    a('s_add_u32 s27, s27, s23')
    a('s_lshl_b32 s22, s22, 5')
    a('s_add_u32 s27, s27, s22')
    a('v_and_b32 v2, 31, v0')
    a('v_mul_u32_u24 v2, 2560, v2')
    a('v_lshrrev_b32 v3, 5, v0')
    a('v_lshl_add_u32 v2, v3, 4, v2')
    a('s_waitcnt vmcnt(0)')
    for k in range(8):
        a(f'v_add_f32 v{8+k}, v{8+k}, v{16+k}')
        a(f'v_add_f32 v{24+k}, v{24+k}, v{32+k}')
    for k in range(8):
        a(f'v_add_f32 v{8+k}, v{8+k}, v{24+k}')
    for k in range(4):
        a(f'v_cvt_pk_bf16_f32 v{4+k}, v{8+2*k}, v{9+2*k}')
    a('buffer_store_dwordx4 v[4:7], v2, s[12:15], s27 offen')
    a('L_k3_end:')
    a('s_endpgm')
```

```python
import sys, json
sys.path.insert(0, 'gen')
from common import *
import k1, k2
NAME = 'concat_heads__mha_block_cached__mha_block_cached__near_ridge'
def build(opt, out):
    a = Asm()
    if opt.get('only_k1'):
        a.raw(f'; @launch grid=(512,1,1) block=(256,1,1) lds=81920')
    else:
        a.raw(f'; @launch kernel={NAME}_kernel grid=(512,1,1) block=(256,1,1) lds=81920')
        a.raw(f'; @launch kernel=oproj_kernel grid=(256,1,1) block=(512,1,1) lds={k2.NS*k2.CH+4096}')
        a.raw(f'; @launch kernel=reduce_kernel grid=(640,1,1) block=(256,1,1) lds=0')
    a.raw('.amdgcn_target "amdgcn-amd-amdhsa--gfx950"')
    a.raw('.text')
    k1.gen_k1(a, NAME + '_kernel', opt)
    if not opt.get('only_k1'):
        k2.gen_k2(a, 'oproj_kernel', opt)
        k2.gen_k3(a, 'reduce_kernel', opt)
    a.raw('.section .rodata,"a"')
    a.raw(kernel_desc(NAME + '_kernel', 256))
    if not opt.get('only_k1'):
        a.raw(kernel_desc('oproj_kernel', 192))
        a.raw(kernel_desc('reduce_kernel', 40))
    open(out, 'w').write(a.text())
if __name__ == '__main__':
    opt = json.loads(sys.argv[1]) if len(sys.argv) > 1 else {}
    out = sys.argv[2] if len(sys.argv) > 2 else f'cdna_kernels/{NAME}.s'
    build(opt, out)
```

```python
from common import *
import math

SLOT = 24576
S_K, S_V, S_W, S_X, S_O = 8, 12, 16, 20, 24
S_WV = 28
S_M0B = 29
S_RS = 30
S_KOFF = 31
S_VOFF = 32
S_T = 33
S_C = 34
S_TMP = 35
S_TMP2 = 36
S_W2 = 37
S_OOFF = 38
S_X2 = 39
S_DBG = 40
V_KA, V_KB, V_VS, V_WS, V_XS = 1, 2, 3, 4, 5
V_K0 = 6
V_V0 = 7
V_KR = 8
V_VR = 12
V_M, V_L = 14, 15
V_Q = 16
V_S = 64
V_P = 96
V_F = 112
V_T = 152
V_O = 160
NFB = 10
V_QF = 64
V_E = 88

def gen_k1(a, name, opt):
    kv_flags = opt.get('kv_flags', '')
    stamps = opt.get('stamps', False)
    kernel_header(a, name)
    a('s_cmp_ge_u32 s2, 512')
    a('s_cbranch_scc1 L_k1_end')
    a('s_and_b32 s3, s2, 7')
    a('s_lshr_b32 s4, s2, 3')
    a('s_lshr_b32 s5, s3, 2')
    a('s_and_b32 s3, s3, 3')
    a('s_lshl_b32 s3, s3, 3')
    a('s_and_b32 s6, s4, 7')
    a('s_add_u32 s6, s6, s3')
    a('s_lshr_b32 s7, s4, 3')
    a('s_mul_i32 s3, s5, 40')
    a('s_add_u32 s0, s0, s3')
    a('s_addc_u32 s1, s1, 0')
    a('s_load_dwordx4 s[44:47], s[0:1], 0')
    a('s_load_dwordx4 s[48:51], s[0:1], 16')
    a('s_sub_u32 s0, s0, s3')
    a('s_subb_u32 s1, s1, 0')
    a('s_load_dwordx4 s[52:55], s[0:1], 88')
    nst = [0]
    def stamp():
        if stamps and nst[0] < 16:
            a(f's_memtime s[{60+2*nst[0]}:{61+2*nst[0]}]')
            nst[0] += 1
    stamp()
    a('v_lshrrev_b32 v8, 6, v0')
    a('v_and_b32 v0, 63, v0')
    a(f'v_readfirstlane_b32 s{S_WV}, v8')
    a('v_lshrrev_b32 v8, 3, v0')
    a('v_and_b32 v9, 7, v0')
    a('v_lshrrev_b32 v10, 4, v0')
    a(f's_mul_i32 s{S_M0B}, s{S_WV}, 6144')
    a('v_mul_u32_u24 v11, 384, v8')
    a(f'v_add_u32 v11, s{S_M0B}, v11')
    a('v_xor_b32 v12, v9, v10')
    a(f'v_lshl_add_u32 v{V_KA}, v12, 4, v11')
    a('v_xor_b32 v12, 4, v12')
    a(f'v_lshl_add_u32 v{V_KB}, v12, 4, v11')
    a(f'v_add_u32 v{V_KB}, 3072, v{V_KB}')
    a('v_and_b32 v12, 1, v10')
    a('v_lshlrev_b32 v12, 2, v12')
    a('v_xor_b32 v12, v9, v12')
    a(f'v_lshl_add_u32 v{V_VS}, v12, 4, v11')
    a(f's_lshl_b32 s{S_TMP}, s{S_WV}, 4')
    a(f'v_add_u32 v13, s{S_TMP}, v8')
    a('v_mul_u32_u24 v13, 12288, v13')
    a(f'v_lshl_add_u32 v{V_WS}, v12, 4, v13')
    a('v_and_b32 v8, 31, v0')
    a('v_lshrrev_b32 v9, 5, v0')
    a(f's_lshl_b32 s{S_TMP}, s{S_WV}, 5')
    a('v_and_b32 v10, 15, v0')
    a(f'v_add_u32 v10, s{S_TMP}, v10')
    a('v_mul_u32_u24 v10, 1280, v10')
    a('v_lshrrev_b32 v11, 4, v0')
    a(f'v_lshl_add_u32 v{V_XS}, v11, 4, v10')
    a('v_lshrrev_b32 v10, 3, v8')
    a('v_mul_u32_u24 v10, 3072, v10')
    a('v_and_b32 v11, 7, v8')
    a('v_lshl_add_u32 v10, v11, 7, v10')
    a('v_bfe_u32 v11, v8, 1, 3')
    a('v_xor_b32 v11, v11, v9')
    a(f'v_lshl_add_u32 v{V_K0}, v11, 4, v10')
    a('v_bfe_u32 v10, v0, 2, 2')
    a('v_lshlrev_b32 v11, 7, v10')
    a('v_lshrrev_b32 v10, 1, v10')
    a('v_lshl_add_u32 v11, v10, 6, v11')
    a('v_bfe_u32 v10, v0, 4, 1')
    a('v_lshl_add_u32 v11, v10, 5, v11')
    a('v_and_b32 v10, 1, v0')
    a('v_lshl_add_u32 v11, v10, 4, v11')
    a('v_bfe_u32 v10, v0, 1, 1')
    a('v_lshl_add_u32 v11, v10, 3, v11')
    a(f'v_lshl_add_u32 v{V_V0}, v9, 9, v11')
    a('v_mul_u32_u24 v10, 6144, v9')
    a(f'v_add_u32 v{V_VR}, v10, v11')
    a(f'v_xor_b32 v{V_VR+1}, 64, v{V_VR}')
    a('s_waitcnt lgkmcnt(0)')
    a('s_lshl_b32 s3, s7, 5')
    a('s_add_u32 s3, s3, s6')
    a('s_mul_i32 s3, s3, 393216')
    a('s_add_u32 s46, s46, s3')
    a('s_addc_u32 s47, s47, 0')
    a('s_add_u32 s48, s48, s3')
    a('s_addc_u32 s49, s49, 0')
    srd(a, S_K, 46, 47, 393216)
    srd(a, S_V, 48, 49, 393216)
    a('s_mul_i32 s3, s6, 384')
    a('s_add_u32 s50, s50, s3')
    a('s_addc_u32 s51, s51, 0')
    a(f's_sub_u32 s4, {640*12288}, s3')
    srd(a, S_W, 50, 51, 's4')
    a('s_mul_i32 s3, s7, 163840')
    a('s_add_u32 s44, s44, s3')
    a('s_addc_u32 s45, s45, 0')
    srd(a, S_X, 44, 45, 163840)
    srd(a, S_O, 54, 55, 2*32*384*1024)
    a('s_lshl_b32 s3, s5, 5')
    a('s_lshl_b32 s4, s7, 2')
    a('s_add_u32 s3, s3, s4')
    a(f's_add_u32 s3, s3, s{S_WV}')
    a('s_mul_i32 s3, s3, 384')
    a('s_mul_i32 s4, s6, 12')
    a('s_add_u32 s3, s3, s4')
    a(f's_lshl_b32 s{S_OOFF}, s3, 10')
    if stamps:
        srd(a, S_DBG, 52, 53, 256)
    c = (192 ** -0.5) * math.log2(math.e)
    import struct
    a(f's_mov_b32 s{S_C}, 0x{struct.unpack("<I", struct.pack("<f", c))[0]:08x}')

    def issue_W(c):
        slot = (c % 3) * SLOT
        a(f's_mov_b32 s{S_TMP}, {c*64*12288}')
        a(f's_mov_b32 s{S_W2}, {c*64*12288 + 8*12288}')
        for j in range(6):
            cb = j % 3
            a(f's_add_u32 m0, s{S_M0B}, {slot + j*1024 - cb*128}')
            a('s_nop 0')
            so = S_TMP if j < 3 else S_W2
            a(f'buffer_load_dwordx4 v{V_WS}, s[{S_W}:{S_W+3}], s{so} offen offset:{cb*128} lds')
        xb = V_Q + (c % 3) * 16
        for s in range(4):
            so = '0' if s % 2 == 0 else f's{S_X2}'
            a(f'buffer_load_dwordx4 {vr(xb+4*s,4)}, v{V_XS}, s[{S_X}:{S_X+3}], {so} offen offset:{c*128 + (s//2)*64}')

    def early(n):
        t, j = n // 6, n % 6
        cb = j % 3
        d = vr(V_E + 4*n, 4)
        if t == 1:
            a(f'buffer_load_dwordx4 {d}, v{V_VS}, s[{S_V}:{S_V+3}], 0 offen offset:{cb*128 + (3072 if j >= 3 else 0)} {kv_flags}')
        else:
            so = '0' if t == 0 else f's{S_VOFF}'
            a(f'buffer_load_dwordx4 {d}, v{V_KA if j < 3 else V_KB}, s[{S_K}:{S_K+3}], {so} offen offset:{cb*128} {kv_flags}')

    def issue_K(slot):
        if slot is None:
            a(f's_add_u32 s{S_TMP}, s{S_M0B}, s{S_RS}')
        else:
            a(f's_add_u32 s{S_TMP}, s{S_M0B}, {slot}')
        for j in range(6):
            cb = j % 3
            a(f's_add_u32 m0, s{S_TMP}, {j*1024 - cb*128}')
            a('s_nop 0')
            v = V_KA if j < 3 else V_KB
            a(f'buffer_load_dwordx4 v{v}, s[{S_K}:{S_K+3}], s{S_KOFF} offen offset:{cb*128} {kv_flags} lds')
        a(f's_add_u32 s{S_KOFF}, s{S_KOFF}, {SLOT}')

    def issue_V(slot):
        if slot is None:
            a(f's_add_u32 s{S_TMP}, s{S_M0B}, s{S_RS}')
        else:
            a(f's_add_u32 s{S_TMP}, s{S_M0B}, {slot}')
        for j in range(6):
            cb = j % 3
            off = cb*128 + (3072 if j >= 3 else 0)
            a(f's_add_u32 m0, s{S_TMP}, {j*1024 - off}')
            a('s_nop 0')
            a(f'buffer_load_dwordx4 v{V_VS}, s[{S_V}:{S_V+3}], s{S_VOFF} offen offset:{off} {kv_flags} lds')
        a(f's_add_u32 s{S_VOFF}, s{S_VOFF}, {SLOT}')

    def next_slot():
        a(f's_add_u32 s{S_RS}, s{S_RS}, {SLOT}')
        a(f's_cmp_eq_u32 s{S_RS}, {3*SLOT}')
        a(f's_cselect_b32 s{S_RS}, 0, s{S_RS}')

    def pipeline(n, rd, per, mm, depth, NFB=NFB):
        for i in range(min(depth, n)):
            rd(i, i % NFB)
        for i in range(n):
            issued = min(n, i + depth)
            a(f's_waitcnt lgkmcnt({(issued - i - 1) * per})')
            mm(i, i % NFB)
            if i + depth < n:
                rd(i + depth, (i + depth) % NFB)

    a(f's_mov_b32 s{S_KOFF}, {2*SLOT}')
    a(f's_mov_b32 s{S_VOFF}, {SLOT}')
    a(f's_mov_b32 s{S_X2}, 20480')
    for i in range(96):
        a(f'v_mov_b32 v{V_O+i}, 0')
    def qproj(sched, tag):
        q = []
        ne = [0]
        def ex(k):
            for _ in range(sched.get(k, 0)):
                early(ne[0]); ne[0] += 1; q.append('e')
        ex(-1)
        for c in range(3):
            issue_W(c); q.extend([c]*10); ex(c)
        for c in range(10):
            last = max(i for i, t in enumerate(q) if t == c)
            a(f's_waitcnt vmcnt({len(q) - 1 - last})')
            a('s_barrier')
            if tag == 0 or True:
                stamp2(c)
            slot = (c % 3) * SLOT
            xb = V_Q + (c % 3) * 16
            for p in range(2):
                for k in range(4):
                    a(f'v_permlane16_swap_b32 v{xb+8*p+k}, v{xb+8*p+4+k}')
            sh = slot if slot + 5*3072 + 512 + 2048 > 65535 - 6144 else 0
            def rd(i, buf):
                s, j = i // 6, i % 6
                for t in range(2):
                    off = slot - sh + (4*(s//2) + s % 2)*3072 + t*512 + (j//2)*1024
                    a(f'ds_read_b64_tr_b16 {vr(V_QF+4*buf+2*t,2)}, v{V_VR + j % 2} offset:{off}')
            def mm(i, buf):
                s, j = i // 6, i % 6
                a(f'v_mfma_f32_32x32x16_bf16 {vr(V_O+16*j,16)}, {vr(V_QF+4*buf,4)}, {vr(xb+4*s,4)}, {vr(V_O+16*j,16)}')
            if sh:
                a(f'v_add_u32 v{V_VR}, {sh}, v{V_VR}')
                a(f'v_add_u32 v{V_VR+1}, {sh}, v{V_VR+1}')
            pipeline(24, rd, 2, mm, 5, 6)
            if sh:
                a(f'v_subrev_u32 v{V_VR}, {sh}, v{V_VR}')
                a(f'v_subrev_u32 v{V_VR+1}, {sh}, v{V_VR+1}')
            a('s_barrier')
            if c + 3 < 10:
                issue_W(c + 3); q.extend([c+3]*10); ex(c + 3)
        assert ne[0] == 18
    base_st = nst[0]
    def stamp2(c):
        nst[0] = base_st + c
        stamp()
    s1 = {int(k): v for k, v in opt.get('sched1', {'2': 18}).items()}
    s2 = {int(k): v for k, v in opt.get('sched2', {'-1': 18}).items()}
    if s1 == s2:
        qproj(s1, 0)
    else:
        a('s_cmp_ge_u32 s2, 256')
        a('s_cbranch_scc1 L_k1_q2')
        qproj(s1, 0)
        a('s_branch L_k1_qdone')
        a('L_k1_q2:')
        qproj(s2, 1)
        a('L_k1_qdone:')
    a(f'v_lshlrev_b32 v{V_KR}, 4, v0')
    a(f'v_add_u32 v{V_KR}, s{S_M0B}, v{V_KR}')
    a('s_waitcnt vmcnt(0)')
    for n in range(18):
        a(f'ds_write_b128 v{V_KR}, {vr(V_E+4*n,4)} offset:{(n//6)*SLOT + (n%6)*1024}')
    a('s_nop 7')
    a('s_nop 3')
    for i in range(48):
        a(f'v_cvt_pk_bf16_f32 v{V_Q+i}, v{V_O+2*i}, v{V_O+2*i+1}')
    for i in range(96):
        a(f'v_mov_b32 v{V_O+i}, 0')
    a(f'v_mov_b32 v{V_M}, 0xff800000')
    a(f'v_mov_b32 v{V_L}, 0')
    a(f's_mov_b32 s{S_RS}, 0')
    a('s_waitcnt lgkmcnt(0)')
    a(f's_mov_b32 s{S_T}, 0')
    stamp()
    a('L_k1_loop:')
    a(f'v_add_u32 v{V_KR}, s{S_RS}, v{V_K0}')
    for j in range(1, 4):
        a(f'v_xor_b32 v{V_KR+j}, {32*j}, v{V_KR}')
    a('s_waitcnt vmcnt(12)')
    a('s_barrier')
    def rdk(i, buf):
        kb, s = i // 12, i % 12
        a(f'ds_read_b128 {vr(V_F+4*buf,4)}, v{V_KR + s % 4} offset:{kb*12288 + (s//4)*1024}')
    def mmk(i, buf):
        kb, s = i // 12, i % 12
        cin = '0' if s == 0 else vr(V_S+16*kb, 16)
        a(f'v_mfma_f32_32x32x16_bf16 {vr(V_S+16*kb,16)}, {vr(V_F+4*buf,4)}, {vr(V_Q+4*s,4)}, {cin}')
    pipeline(24, rdk, 1, mmk, 9)
    a('s_barrier')
    issue_V(None)
    next_slot()
    a(f'v_add_u32 v{V_VR}, s{S_RS}, v{V_V0}')
    a(f'v_xor_b32 v{V_VR+1}, 64, v{V_VR}')
    T = V_T
    a(f'v_max3_f32 v{T}, v{V_S}, v{V_S+1}, v{V_S+2}')
    a(f'v_max3_f32 v{T+1}, v{V_S+3}, v{V_S+4}, v{V_S+5}')
    for k in range(6, 30, 4):
        a(f'v_max3_f32 v{T}, v{T}, v{V_S+k}, v{V_S+k+1}')
        a(f'v_max3_f32 v{T+1}, v{T+1}, v{V_S+k+2}, v{V_S+k+3}')
    a(f'v_max3_f32 v{T}, v{T}, v{V_S+30}, v{V_S+31}')
    a(f'v_max3_f32 v{T}, v{T}, v{T+1}, v{V_M}')
    a(f'v_mov_b32 v{T+1}, v{T}')
    a('s_nop 1')
    a(f'v_permlane32_swap_b32 v{T}, v{T+1}')
    a('s_nop 1')
    a(f'v_max_f32 v{T}, v{T}, v{T+1}')
    a(f'v_sub_f32 v{T+1}, v{V_M}, v{T}')
    a(f'v_mul_f32 v{T+1}, s{S_C}, v{T+1}')
    a(f'v_exp_f32 v{T+1}, v{T+1}')
    a(f'v_mov_b32 v{V_M}, v{T}')
    a(f'v_mul_f32 v{T}, s{S_C}, v{T}')
    a(f'v_mul_f32 v{V_L}, v{V_L}, v{T+1}')
    for k in range(32):
        a(f'v_fma_f32 v{V_S+k}, v{V_S+k}, s{S_C}, -v{T}')
    for k in range(32):
        a(f'v_exp_f32 v{V_S+k}, v{V_S+k}')
    for k in range(96):
        a(f'v_mul_f32 v{V_O+k}, v{V_O+k}, v{T+1}')
    a(f'v_add_f32 v{T+2}, v{V_S}, v{V_S+1}')
    a(f'v_add_f32 v{T+3}, v{V_S+2}, v{V_S+3}')
    for k in range(4, 32, 2):
        a(f'v_add_f32 v{T+2}, v{T+2}, v{V_S+k}')
        a(f'v_add_f32 v{T+3}, v{T+3}, v{V_S+k+1}')
    for k in range(16):
        a(f'v_cvt_pk_bf16_f32 v{V_P+k}, v{V_S+2*k}, v{V_S+2*k+1}')
    a(f'v_add_f32 v{V_L}, v{V_L}, v{T+2}')
    a(f'v_add_f32 v{V_L}, v{V_L}, v{T+3}')
    a('s_waitcnt vmcnt(12)')
    a('s_barrier')
    def rdv(i, buf):
        ks, j = i // 6, i % 6
        for t in range(2):
            a(f'ds_read_b64_tr_b16 {vr(V_F+4*buf+2*t,2)}, v{V_VR + j % 2} offset:{(2*ks+t)*3072 + (j//2)*1024}')
    def mmv(i, buf):
        ks, j = i // 6, i % 6
        a(f'v_mfma_f32_32x32x16_bf16 {vr(V_O+16*j,16)}, {vr(V_F+4*buf,4)}, {vr(V_P+4*ks,4)}, {vr(V_O+16*j,16)}')
    pipeline(24, rdv, 2, mmv, 7)
    a('s_barrier')
    issue_K(None)
    next_slot()
    a(f's_add_u32 s{S_T}, s{S_T}, 1')
    a(f's_cmp_lt_u32 s{S_T}, 16')
    a('s_cbranch_scc1 L_k1_loop')
    stamp()
    a(f'v_mov_b32 v{T}, v{V_L}')
    a('s_nop 1')
    a(f'v_permlane32_swap_b32 v{V_L}, v{T}')
    a('s_nop 1')
    a(f'v_add_f32 v{V_L}, v{V_L}, v{T}')
    a(f'v_rcp_f32 v{V_L}, v{V_L}')
    a(f'v_lshlrev_b32 v{T}, 4, v0')
    a('s_nop 7')
    for f in range(12):
        for k in range(8):
            a(f'v_mul_f32 v{V_O+8*f+k}, v{V_O+8*f+k}, v{V_L}')
        for k in range(4):
            a(f'v_cvt_pk_bf16_f32 v{V_Q+4*f+k}, v{V_O+8*f+2*k}, v{V_O+8*f+2*k+1}')
        if f % 4 == 0 and f > 0:
            a(f's_add_u32 s{S_OOFF}, s{S_OOFF}, 4096')
        a(f'buffer_store_dwordx4 {vr(V_Q+4*f,4)}, v{T}, s[{S_O}:{S_O+3}], s{S_OOFF} offen offset:{(f%4)*1024}')
    if stamps:
        a('s_waitcnt vmcnt(0)')
        stamp()
        a('s_waitcnt lgkmcnt(0)')
        a('s_lshr_b32 s3, s2, 7')
        a('s_and_b32 s4, s2, 127')
        a('s_cmp_lg_u32 s4, 5')
        a('s_cbranch_scc1 L_k1_end')
        a('s_lshl_b32 s3, s3, 6')
        a('v_mov_b32 v1, s3')
        for k in range(nst[0]):
            if k > 0:
                a(f's_sub_u32 s{60+2*k}, s{60+2*k}, s60')
            a(f'v_mov_b32 v4, s{60+2*k}')
            a(f'buffer_store_dword v4, v1, s[{S_DBG}:{S_DBG+3}], 0 offen offset:{4*k}')
            a('s_waitcnt vmcnt(0)')
    a('L_k1_end:')
    a('s_endpgm')
```

```python
from common import *
import math

SLOT = 24576
S_K, S_V, S_W, S_X, S_O = 8, 12, 16, 20, 24
S_WV = 28
S_M0B = 29
S_RS = 30
S_KOFF = 31
S_VOFF = 32
S_T = 33
S_C = 34
S_TMP = 35
S_TMP2 = 36
S_W2 = 37
S_OOFF = 38
S_X2 = 39
S_XM0 = 56
S_WM0 = 57
XB = 49152
WCH = 12288
S_DBG = 40
V_KA, V_KB, V_VS, V_WS, V_XS = 1, 2, 3, 4, 5
V_K0 = 6
V_V0 = 7
V_KR = 8
V_VR = 12
V_M, V_L = 14, 15
V_Q = 16
V_S = 64
V_P = 96
V_F = 112
V_T = 152
V_O = 160
NFB = 10
V_QF = 32
V_E = 88

def gen_k1(a, name, opt):
    kv_flags = opt.get('kv_flags', '')
    stamps = opt.get('stamps', False)
    kernel_header(a, name)
    a('s_cmp_ge_u32 s2, 512')
    a('s_cbranch_scc1 L_k1_end')
    a('s_and_b32 s3, s2, 7')
    a('s_lshr_b32 s4, s2, 3')
    a('s_lshr_b32 s5, s3, 2')
    a('s_and_b32 s3, s3, 3')
    a('s_lshl_b32 s3, s3, 3')
    a('s_and_b32 s6, s4, 7')
    a('s_add_u32 s6, s6, s3')
    a('s_lshr_b32 s7, s4, 3')
    a('s_mul_i32 s3, s5, 40')
    a('s_add_u32 s0, s0, s3')
    a('s_addc_u32 s1, s1, 0')
    a('s_load_dwordx4 s[44:47], s[0:1], 0')
    a('s_load_dwordx4 s[48:51], s[0:1], 16')
    a('s_sub_u32 s0, s0, s3')
    a('s_subb_u32 s1, s1, 0')
    a('s_load_dwordx4 s[52:55], s[0:1], 88')
    nst = [0]
    def stamp():
        if stamps and nst[0] < 16:
            a(f's_memtime s[{60+2*nst[0]}:{61+2*nst[0]}]')
            nst[0] += 1
    stamp()
    a('v_lshrrev_b32 v8, 6, v0')
    a('v_and_b32 v0, 63, v0')
    a(f'v_readfirstlane_b32 s{S_WV}, v8')
    a('v_lshrrev_b32 v8, 3, v0')
    a('v_and_b32 v9, 7, v0')
    a('v_lshrrev_b32 v10, 4, v0')
    a(f's_mul_i32 s{S_M0B}, s{S_WV}, 6144')
    a('v_mul_u32_u24 v11, 384, v8')
    a(f'v_add_u32 v11, s{S_M0B}, v11')
    a('v_xor_b32 v12, v9, v10')
    a(f'v_lshl_add_u32 v{V_KA}, v12, 4, v11')
    a('v_xor_b32 v12, 4, v12')
    a(f'v_lshl_add_u32 v{V_KB}, v12, 4, v11')
    a(f'v_add_u32 v{V_KB}, 3072, v{V_KB}')
    a('v_and_b32 v12, 1, v10')
    a('v_lshlrev_b32 v12, 2, v12')
    a('v_xor_b32 v12, v9, v12')
    a(f'v_lshl_add_u32 v{V_VS}, v12, 4, v11')
    a(f's_lshl_b32 s{S_TMP}, s{S_WV}, 3')
    a(f'v_add_u32 v13, s{S_TMP}, v8')
    a('v_mul_u32_u24 v13, 12288, v13')
    a(f'v_lshl_add_u32 v{V_WS}, v12, 4, v13')
    a(f's_lshl_b32 s{S_TMP}, s{S_WV}, 5')
    a(f'v_add_u32 v13, s{S_TMP}, v8')
    a('v_mul_u32_u24 v13, 1280, v13')
    a('v_xor_b32 v12, v9, v10')
    a(f'v_lshl_add_u32 v{V_XS}, v12, 4, v13')
    a('v_xor_b32 v12, 4, v12')
    a(f'v_lshl_add_u32 v{V_M}, v12, 4, v13')
    a(f'v_add_u32 v{V_M}, {8*1280}, v{V_M}')
    a('v_and_b32 v8, 31, v0')
    a('v_lshrrev_b32 v9, 5, v0')
    a('v_bfe_u32 v11, v8, 1, 3')
    a('v_xor_b32 v11, v11, v9')
    a('v_lshlrev_b32 v11, 4, v11')
    a('v_lshl_add_u32 v11, v8, 7, v11')
    a(f's_lshl_b32 s{S_XM0}, s{S_WV}, 12')
    a(f's_add_u32 s{S_XM0}, s{S_XM0}, {XB}')
    a(f'v_add_u32 v{V_L}, s{S_XM0}, v11')
    a(f's_mul_i32 s{S_WM0}, s{S_WV}, 3072')
    a('v_lshrrev_b32 v10, 3, v8')
    a('v_mul_u32_u24 v10, 3072, v10')
    a('v_and_b32 v11, 7, v8')
    a('v_lshl_add_u32 v10, v11, 7, v10')
    a('v_bfe_u32 v11, v8, 1, 3')
    a('v_xor_b32 v11, v11, v9')
    a(f'v_lshl_add_u32 v{V_K0}, v11, 4, v10')
    a('v_bfe_u32 v10, v0, 2, 2')
    a('v_lshlrev_b32 v11, 7, v10')
    a('v_lshrrev_b32 v10, 1, v10')
    a('v_lshl_add_u32 v11, v10, 6, v11')
    a('v_bfe_u32 v10, v0, 4, 1')
    a('v_lshl_add_u32 v11, v10, 5, v11')
    a('v_and_b32 v10, 1, v0')
    a('v_lshl_add_u32 v11, v10, 4, v11')
    a('v_bfe_u32 v10, v0, 1, 1')
    a('v_lshl_add_u32 v11, v10, 3, v11')
    a(f'v_lshl_add_u32 v{V_V0}, v9, 9, v11')
    a('v_mul_u32_u24 v10, 3072, v9')
    a(f'v_add_u32 v{V_VR}, v10, v11')
    a(f'v_xor_b32 v{V_VR+1}, 64, v{V_VR}')
    for j in range(4):
        a(f'v_xor_b32 v{V_KR+j}, {32*j}, v{V_L}')
    a('s_waitcnt lgkmcnt(0)')
    a('s_lshl_b32 s3, s7, 5')
    a('s_add_u32 s3, s3, s6')
    a('s_mul_i32 s3, s3, 393216')
    a('s_add_u32 s46, s46, s3')
    a('s_addc_u32 s47, s47, 0')
    a('s_add_u32 s48, s48, s3')
    a('s_addc_u32 s49, s49, 0')
    srd(a, S_K, 46, 47, 393216)
    srd(a, S_V, 48, 49, 393216)
    a('s_mul_i32 s3, s6, 384')
    a('s_add_u32 s50, s50, s3')
    a('s_addc_u32 s51, s51, 0')
    a(f's_sub_u32 s4, {640*12288}, s3')
    srd(a, S_W, 50, 51, 's4')
    a('s_mul_i32 s3, s7, 163840')
    a('s_add_u32 s44, s44, s3')
    a('s_addc_u32 s45, s45, 0')
    srd(a, S_X, 44, 45, 163840)
    srd(a, S_O, 54, 55, 2*32*384*1024)
    a('s_lshl_b32 s3, s5, 5')
    a('s_lshl_b32 s4, s7, 2')
    a('s_add_u32 s3, s3, s4')
    a(f's_add_u32 s3, s3, s{S_WV}')
    a('s_mul_i32 s3, s3, 384')
    a('s_mul_i32 s4, s6, 12')
    a('s_add_u32 s3, s3, s4')
    a(f's_lshl_b32 s{S_OOFF}, s3, 10')
    if stamps:
        srd(a, S_DBG, 52, 53, 256)
    c = (192 ** -0.5) * math.log2(math.e)
    import struct
    a(f's_mov_b32 s{S_C}, 0x{struct.unpack("<I", struct.pack("<f", c))[0]:08x}')

    def issue_W(i):
        a(f's_mov_b32 s{S_TMP}, {i*32*12288}')
        for cb in range(3):
            a(f's_add_u32 m0, s{S_WM0}, {(i % 4)*WCH + cb*1024 - cb*128}')
            a('s_nop 0')
            a(f'buffer_load_dwordx4 v{V_WS}, s[{S_W}:{S_W+3}], s{S_TMP} offen offset:{cb*128} lds')

    def issue_X(c):
        for j in range(4):
            a(f's_add_u32 m0, s{S_XM0}, {(c % 2)*16384 + j*1024 - c*128}')
            a('s_nop 0')
            so = '0' if j < 2 else f's{S_X2}'
            a(f'buffer_load_dwordx4 v{V_XS if j % 2 == 0 else V_M}, s[{S_X}:{S_X+3}], {so} offen offset:{c*128} lds')

    def early(n):
        t, j = n // 6, n % 6
        cb = j % 3
        d = vr(V_E + 4*n, 4)
        if t == 1:
            a(f'buffer_load_dwordx4 {d}, v{V_VS}, s[{S_V}:{S_V+3}], 0 offen offset:{cb*128 + (3072 if j >= 3 else 0)} {kv_flags}')
        else:
            so = '0' if t == 0 else f's{S_VOFF}'
            a(f'buffer_load_dwordx4 {d}, v{V_KA if j < 3 else V_KB}, s[{S_K}:{S_K+3}], {so} offen offset:{cb*128} {kv_flags}')

    def issue_K(slot):
        if slot is None:
            a(f's_add_u32 s{S_TMP}, s{S_M0B}, s{S_RS}')
        else:
            a(f's_add_u32 s{S_TMP}, s{S_M0B}, {slot}')
        for j in range(6):
            cb = j % 3
            a(f's_add_u32 m0, s{S_TMP}, {j*1024 - cb*128}')
            a('s_nop 0')
            v = V_KA if j < 3 else V_KB
            a(f'buffer_load_dwordx4 v{v}, s[{S_K}:{S_K+3}], s{S_KOFF} offen offset:{cb*128} {kv_flags} lds')
        a(f's_add_u32 s{S_KOFF}, s{S_KOFF}, {SLOT}')

    def issue_V(slot):
        if slot is None:
            a(f's_add_u32 s{S_TMP}, s{S_M0B}, s{S_RS}')
        else:
            a(f's_add_u32 s{S_TMP}, s{S_M0B}, {slot}')
        for j in range(6):
            cb = j % 3
            off = cb*128 + (3072 if j >= 3 else 0)
            a(f's_add_u32 m0, s{S_TMP}, {j*1024 - off}')
            a('s_nop 0')
            a(f'buffer_load_dwordx4 v{V_VS}, s[{S_V}:{S_V+3}], s{S_VOFF} offen offset:{off} {kv_flags} lds')
        a(f's_add_u32 s{S_VOFF}, s{S_VOFF}, {SLOT}')

    def next_slot():
        a(f's_add_u32 s{S_RS}, s{S_RS}, {SLOT}')
        a(f's_cmp_eq_u32 s{S_RS}, {3*SLOT}')
        a(f's_cselect_b32 s{S_RS}, 0, s{S_RS}')

    def pipeline(n, rd, per, mm, depth, NFB=NFB):
        for i in range(min(depth, n)):
            rd(i, i % NFB)
        for i in range(n):
            issued = min(n, i + depth)
            a(f's_waitcnt lgkmcnt({(issued - i - 1) * per})')
            mm(i, i % NFB)
            if i + depth < n:
                rd(i + depth, (i + depth) % NFB)

    a(f's_mov_b32 s{S_KOFF}, {2*SLOT}')
    a(f's_mov_b32 s{S_VOFF}, {SLOT}')
    a(f's_mov_b32 s{S_X2}, 20480')
    for i in range(96):
        a(f'v_mov_b32 v{V_O+i}, 0')
    def qproj(sched, tag):
        q = []
        ne = [0]
        def ex(k):
            for _ in range(sched.get(k, 0)):
                early(ne[0]); ne[0] += 1; q.append('e')
        ex(-1)
        issue_W(0); q.extend(['w0']*3)
        issue_X(0); q.extend(['x0']*4)
        issue_W(1); q.extend(['w1']*3)
        issue_W(2); q.extend(['w2']*3)
        issue_X(1); q.extend(['x1']*4)
        ex(2)
        for i in range(20):
            need = [f'w{i}'] + ([f'x{i//2}'] if i % 2 == 0 else [])
            last = max(k for k, t in enumerate(q) if t in need)
            a(f's_waitcnt vmcnt({len(q) - 1 - last})')
            a('s_barrier')
            if i % 2 == 0:
                stamp2(i // 2)
                for s in range(4):
                    a(f'ds_read_b128 {vr(V_Q+4*s,4)}, v{V_KR+s} offset:{((i//2) % 2)*16384}')
            if i + 3 < 20:
                issue_W(i + 3); q.extend([f'w{i+3}']*3)
            slot = (i % 4) * WCH
            def rd(n, buf):
                s, j = n // 6, n % 6
                for t in range(2):
                    off = slot + s*6144 + t*512 + (j//2)*1024
                    a(f'ds_read_b64_tr_b16 {vr(V_QF+4*buf+2*t,2)}, v{V_VR + j % 2} offset:{off}')
            def mm(n, buf):
                s, j = n // 6, n % 6
                a(f'v_mfma_f32_32x32x16_bf16 {vr(V_O+16*j,16)}, {vr(V_QF+4*buf,4)}, {vr(V_Q+4*(s+2*(i%2)),4)}, {vr(V_O+16*j,16)}')
                if n == 0 and i % 2 == 0 and i//2 + 2 < 10:
                    issue_X(i//2 + 2); q.extend([f'x{i//2+2}']*4)
                if n == 6:
                    ex(i + 3)
            pipeline(12, rd, 2, mm, 6, 12)
        a('s_barrier')
        assert ne[0] == 18
    base_st = nst[0]
    def stamp2(c):
        nst[0] = base_st + c
        stamp()
    s1 = {int(k): v for k, v in opt.get('sched1', {'2': 18}).items()}
    s2 = {int(k): v for k, v in opt.get('sched2', {'-1': 18}).items()}
    if s1 == s2:
        qproj(s1, 0)
    else:
        a('s_cmp_ge_u32 s2, 256')
        a('s_cbranch_scc1 L_k1_q2')
        qproj(s1, 0)
        a('s_branch L_k1_qdone')
        a('L_k1_q2:')
        qproj(s2, 1)
        a('L_k1_qdone:')
    a(f'v_lshlrev_b32 v{V_KR}, 4, v0')
    a(f'v_add_u32 v{V_KR}, s{S_M0B}, v{V_KR}')
    a('s_waitcnt vmcnt(0)')
    for n in range(18):
        a(f'ds_write_b128 v{V_KR}, {vr(V_E+4*n,4)} offset:{(n//6)*SLOT + (n%6)*1024}')
    a('s_nop 7')
    a('s_nop 3')
    for i in range(48):
        a(f'v_cvt_pk_bf16_f32 v{V_Q+i}, v{V_O+2*i}, v{V_O+2*i+1}')
    for i in range(96):
        a(f'v_mov_b32 v{V_O+i}, 0')
    a(f'v_mov_b32 v{V_M}, 0xff800000')
    a(f'v_mov_b32 v{V_L}, 0')
    a(f's_mov_b32 s{S_RS}, 0')
    a('s_waitcnt lgkmcnt(0)')
    a(f's_mov_b32 s{S_T}, 0')
    stamp()
    a('L_k1_loop:')
    a(f'v_add_u32 v{V_KR}, s{S_RS}, v{V_K0}')
    for j in range(1, 4):
        a(f'v_xor_b32 v{V_KR+j}, {32*j}, v{V_KR}')
    a('s_waitcnt vmcnt(12)')
    a('s_barrier')
    def rdk(i, buf):
        kb, s = i // 12, i % 12
        a(f'ds_read_b128 {vr(V_F+4*buf,4)}, v{V_KR + s % 4} offset:{kb*12288 + (s//4)*1024}')
    def mmk(i, buf):
        kb, s = i // 12, i % 12
        cin = '0' if s == 0 else vr(V_S+16*kb, 16)
        a(f'v_mfma_f32_32x32x16_bf16 {vr(V_S+16*kb,16)}, {vr(V_F+4*buf,4)}, {vr(V_Q+4*s,4)}, {cin}')
    pipeline(24, rdk, 1, mmk, 9)
    a('s_barrier')
    issue_V(None)
    next_slot()
    a(f'v_add_u32 v{V_VR}, s{S_RS}, v{V_V0}')
    a(f'v_xor_b32 v{V_VR+1}, 64, v{V_VR}')
    T = V_T
    a(f'v_max3_f32 v{T}, v{V_S}, v{V_S+1}, v{V_S+2}')
    a(f'v_max3_f32 v{T+1}, v{V_S+3}, v{V_S+4}, v{V_S+5}')
    for k in range(6, 30, 4):
        a(f'v_max3_f32 v{T}, v{T}, v{V_S+k}, v{V_S+k+1}')
        a(f'v_max3_f32 v{T+1}, v{T+1}, v{V_S+k+2}, v{V_S+k+3}')
    a(f'v_max3_f32 v{T}, v{T}, v{V_S+30}, v{V_S+31}')
    a(f'v_max3_f32 v{T}, v{T}, v{T+1}, v{V_M}')
    a(f'v_mov_b32 v{T+1}, v{T}')
    a('s_nop 1')
    a(f'v_permlane32_swap_b32 v{T}, v{T+1}')
    a('s_nop 1')
    a(f'v_max_f32 v{T}, v{T}, v{T+1}')
    a(f'v_sub_f32 v{T+1}, v{V_M}, v{T}')
    a(f'v_mul_f32 v{T+1}, s{S_C}, v{T+1}')
    a(f'v_exp_f32 v{T+1}, v{T+1}')
    a(f'v_mov_b32 v{V_M}, v{T}')
    a(f'v_mul_f32 v{T}, s{S_C}, v{T}')
    a(f'v_mul_f32 v{V_L}, v{V_L}, v{T+1}')
    for k in range(32):
        a(f'v_fma_f32 v{V_S+k}, v{V_S+k}, s{S_C}, -v{T}')
    for k in range(32):
        a(f'v_exp_f32 v{V_S+k}, v{V_S+k}')
    for k in range(96):
        a(f'v_mul_f32 v{V_O+k}, v{V_O+k}, v{T+1}')
    a(f'v_add_f32 v{T+2}, v{V_S}, v{V_S+1}')
    a(f'v_add_f32 v{T+3}, v{V_S+2}, v{V_S+3}')
    for k in range(4, 32, 2):
        a(f'v_add_f32 v{T+2}, v{T+2}, v{V_S+k}')
        a(f'v_add_f32 v{T+3}, v{T+3}, v{V_S+k+1}')
    for k in range(16):
        a(f'v_cvt_pk_bf16_f32 v{V_P+k}, v{V_S+2*k}, v{V_S+2*k+1}')
    a(f'v_add_f32 v{V_L}, v{V_L}, v{T+2}')
    a(f'v_add_f32 v{V_L}, v{V_L}, v{T+3}')
    a('s_waitcnt vmcnt(12)')
    a('s_barrier')
    def rdv(i, buf):
        ks, j = i // 6, i % 6
        for t in range(2):
            a(f'ds_read_b64_tr_b16 {vr(V_F+4*buf+2*t,2)}, v{V_VR + j % 2} offset:{(2*ks+t)*3072 + (j//2)*1024}')
    def mmv(i, buf):
        ks, j = i // 6, i % 6
        a(f'v_mfma_f32_32x32x16_bf16 {vr(V_O+16*j,16)}, {vr(V_F+4*buf,4)}, {vr(V_P+4*ks,4)}, {vr(V_O+16*j,16)}')
    pipeline(24, rdv, 2, mmv, 7)
    a('s_barrier')
    issue_K(None)
    next_slot()
    a(f's_add_u32 s{S_T}, s{S_T}, 1')
    a(f's_cmp_lt_u32 s{S_T}, 16')
    a('s_cbranch_scc1 L_k1_loop')
    stamp()
    a(f'v_mov_b32 v{T}, v{V_L}')
    a('s_nop 1')
    a(f'v_permlane32_swap_b32 v{V_L}, v{T}')
    a('s_nop 1')
    a(f'v_add_f32 v{V_L}, v{V_L}, v{T}')
    a(f'v_rcp_f32 v{V_L}, v{V_L}')
    a(f'v_lshlrev_b32 v{T}, 4, v0')
    a('s_nop 7')
    for f in range(12):
        for k in range(8):
            a(f'v_mul_f32 v{V_O+8*f+k}, v{V_O+8*f+k}, v{V_L}')
        for k in range(4):
            a(f'v_cvt_pk_bf16_f32 v{V_Q+4*f+k}, v{V_O+8*f+2*k}, v{V_O+8*f+2*k+1}')
        if f % 4 == 0 and f > 0:
            a(f's_add_u32 s{S_OOFF}, s{S_OOFF}, 4096')
        a(f'buffer_store_dwordx4 {vr(V_Q+4*f,4)}, v{T}, s[{S_O}:{S_O+3}], s{S_OOFF} offen offset:{(f%4)*1024}')
    if stamps:
        a('s_waitcnt vmcnt(0)')
        stamp()
        a('s_waitcnt lgkmcnt(0)')
        a('s_lshr_b32 s3, s2, 7')
        a('s_and_b32 s4, s2, 127')
        a('s_cmp_lg_u32 s4, 5')
        a('s_cbranch_scc1 L_k1_end')
        a('s_lshl_b32 s3, s3, 6')
        a('v_mov_b32 v1, s3')
        for k in range(nst[0]):
            if k > 0:
                a(f's_sub_u32 s{60+2*k}, s{60+2*k}, s60')
            a(f'v_mov_b32 v4, s{60+2*k}')
            a(f'buffer_store_dword v4, v1, s[{S_DBG}:{S_DBG+3}], 0 offen offset:{4*k}')
            a('s_waitcnt vmcnt(0)')
    a('L_k1_end:')
    a('s_endpgm')
```

```python
from common import *
import math

SLOT = 24576
S_K, S_V, S_W, S_X, S_O = 8, 12, 16, 20, 24
S_WV = 28
S_M0B = 29
S_RS = 30
S_KOFF = 31
S_VOFF = 32
S_T = 33
S_C = 34
S_TMP = 35
S_TMP2 = 36
S_W2 = 37
S_OOFF = 38
S_X2 = 39
S_XM0 = 56
S_WM0 = 57
XB = 122880
WCH = 24576
RING = 73728
S_W8 = 92
S_QD = 93
S_F = 84
PBYTES = 256*163840
FLAG_OFF = PBYTES
S_PID = 88
S_B = 89
S_HP = 90
S_BR = 91
S_DBG = 40
V_KA, V_VS, V_WS, V_XS, V_XB = 1, 2, 3, 4, 5
V_KR = 6
V_VR = 10
V_MC, V_L, V_AL, V_TH = 12, 13, 14, 15
V_XR = 12
V_WR = 84
V_Q = 16
V_S = 64
V_P = 96
V_F = 112
V_T = 152
V_O = 160
NFB = 9
V_QF = 48
V_E = 88
BLK = 12288
VB = 3*BLK
S_FLAG = 58
S_OOB = 59
S_RET = 94

def gen_k1(a, name, opt):
    kv_flags = opt.get('kv_flags', '')
    stamps = opt.get('stamps', False)
    kernel_header(a, name)
    a('s_cmp_ge_u32 s2, 256')
    a('s_cbranch_scc1 L_k1_end')
    a('s_and_b32 s3, s2, 7')
    a('s_lshr_b32 s4, s2, 3')
    a('s_lshr_b32 s5, s3, 2')
    a('s_and_b32 s3, s3, 3')
    a('s_lshl_b32 s3, s3, 2')
    a('s_and_b32 s6, s4, 3')
    a(f's_add_u32 s{S_HP}, s6, s3')
    a('s_lshr_b32 s7, s4, 2')
    a(f's_mov_b32 s{S_B}, s7')
    a(f's_mov_b32 s{S_BR}, s5')
    a('s_lshl_b32 s3, s5, 3')
    a('s_add_u32 s3, s3, s7')
    a('s_lshl_b32 s3, s3, 4')
    a(f's_add_u32 s{S_PID}, s3, s{S_HP}')
    a('s_mul_i32 s3, s5, 40')
    a('s_add_u32 s0, s0, s3')
    a('s_addc_u32 s1, s1, 0')
    a('s_load_dwordx4 s[44:47], s[0:1], 0')
    a('s_load_dwordx4 s[48:51], s[0:1], 16')
    a('s_load_dwordx2 s[100:101], s[0:1], 32')
    a('s_sub_u32 s0, s0, s3')
    a('s_subb_u32 s1, s1, 0')
    a('s_load_dwordx4 s[52:55], s[0:1], 88')
    nst = [0]
    def stamp():
        if stamps and nst[0] < 11:
            a(f's_memtime s[{60+2*nst[0]}:{61+2*nst[0]}]')
            nst[0] += 1
    stamp()
    if stamps: a('s_memrealtime s[96:97]')
    a('v_lshrrev_b32 v20, 6, v0')
    a('v_and_b32 v0, 63, v0')
    a(f'v_readfirstlane_b32 s{S_W8}, v20')
    a('v_lshrrev_b32 v20, 3, v0')
    a('v_and_b32 v21, 7, v0')
    a('v_lshrrev_b32 v22, 4, v0')
    a(f's_and_b32 s{S_WV}, s{S_W8}, 3')
    a(f's_lshr_b32 s{S_QD}, s{S_W8}, 2')
    a(f's_lshl_b32 s6, s{S_HP}, 1')
    a(f's_add_u32 s6, s6, s{S_QD}')
    a(f's_mul_i32 s{S_M0B}, s{S_WV}, 3072')
    a(f's_mul_i32 s{S_WM0}, s{S_W8}, 3072')
    a(f's_mul_i32 s{S_RS}, s{S_QD}, {RING}')
    a('v_mul_u32_u24 v23, 384, v20')
    a(f'v_add_u32 v23, s{S_M0B}, v23')
    a(f's_lshl_b32 s{S_TMP}, s{S_WV}, 2')
    a(f's_and_b32 s{S_TMP}, s{S_TMP}, 4')
    a('v_xor_b32 v24, v21, v22')
    a(f'v_xor_b32 v25, s{S_TMP}, v24')
    a(f'v_lshl_add_u32 v{V_KA}, v25, 4, v23')
    a('v_and_b32 v25, 1, v22')
    a('v_lshlrev_b32 v25, 2, v25')
    a('v_xor_b32 v25, v21, v25')
    a(f'v_lshl_add_u32 v{V_VS}, v25, 4, v23')
    a(f's_lshl_b32 s{S_TMP}, s{S_WV}, 3')
    a(f'v_add_u32 v26, s{S_TMP}, v20')
    a('v_mul_u32_u24 v26, 12288, v26')
    a(f'v_lshl_add_u32 v{V_WS}, v25, 4, v26')
    a(f's_lshl_b32 s{S_TMP}, s{S_WV}, 5')
    a(f'v_add_u32 v26, s{S_TMP}, v20')
    a('v_mul_u32_u24 v26, 1280, v26')
    a(f'v_lshl_add_u32 v{V_XS}, v24, 4, v26')
    a('v_xor_b32 v24, 4, v24')
    a(f'v_lshl_add_u32 v{V_XB}, v24, 4, v26')
    a(f'v_add_u32 v{V_XB}, {8*1280}, v{V_XB}')
    a('v_and_b32 v20, 31, v0')
    a('v_lshrrev_b32 v21, 5, v0')
    a('v_bfe_u32 v22, v20, 1, 3')
    a('v_xor_b32 v22, v22, v21')
    a('v_lshlrev_b32 v22, 4, v22')
    a('v_lshl_add_u32 v23, v20, 7, v22')
    a(f's_lshl_b32 s{S_XM0}, s{S_WV}, 12')
    a(f's_add_u32 s{S_XM0}, s{S_XM0}, {XB}')
    a(f'v_add_u32 v{V_XR}, s{S_XM0}, v23')
    a(f's_lshl_b32 s{S_TMP}, s{S_QD}, 11')
    a(f's_add_u32 s{S_XM0}, s{S_XM0}, s{S_TMP}')
    a('v_lshrrev_b32 v23, 3, v20')
    a('v_mul_u32_u24 v23, 3072, v23')
    a('v_and_b32 v24, 7, v20')
    a('v_lshl_add_u32 v23, v24, 7, v23')
    a(f'v_add3_u32 v{V_KR}, v22, v23, s{S_RS}')
    for j in range(1, 4):
        a(f'v_xor_b32 v{V_XR+j}, {32*j}, v{V_XR}')
        a(f'v_xor_b32 v{V_KR+j}, {32*j}, v{V_KR}')
    a('v_bfe_u32 v22, v0, 2, 2')
    a('v_lshlrev_b32 v23, 7, v22')
    a('v_lshrrev_b32 v22, 1, v22')
    a('v_lshl_add_u32 v23, v22, 6, v23')
    a('v_bfe_u32 v22, v0, 4, 1')
    a('v_lshl_add_u32 v23, v22, 5, v23')
    a('v_and_b32 v22, 1, v0')
    a('v_lshl_add_u32 v23, v22, 4, v23')
    a('v_bfe_u32 v22, v0, 1, 1')
    a('v_lshl_add_u32 v23, v22, 3, v23')
    a(f'v_lshl_add_u32 v{V_VR}, v21, 9, v23')
    a(f'v_add_u32 v{V_VR}, {VB}, v{V_VR}')
    a(f'v_add_u32 v{V_VR}, s{S_RS}, v{V_VR}')
    a(f'v_xor_b32 v{V_VR+1}, 64, v{V_VR}')
    a('v_mul_u32_u24 v22, 3072, v21')
    a(f's_mul_i32 s{S_TMP}, s{S_QD}, 12288')
    a(f'v_add3_u32 v{V_WR}, v22, v23, s{S_TMP}')
    a(f'v_xor_b32 v{V_WR+1}, 64, v{V_WR}')
    a(f'v_add_u32 v{V_WR+2}, {2*WCH}, v{V_WR}')
    a(f'v_add_u32 v{V_WR+3}, {2*WCH}, v{V_WR+1}')
    a(f's_add_u32 s{S_M0B}, s{S_M0B}, s{S_RS}')
    a(f's_mov_b32 s{S_OOB}, 0x7f000000')
    a('s_waitcnt lgkmcnt(0)')
    a('s_lshl_b32 s3, s7, 5')
    a('s_add_u32 s3, s3, s6')
    a('s_mul_i32 s3, s3, 393216')
    a('s_add_u32 s46, s46, s3')
    a('s_addc_u32 s47, s47, 0')
    a('s_add_u32 s48, s48, s3')
    a('s_addc_u32 s49, s49, 0')
    srd(a, S_K, 46, 47, 393216)
    srd(a, S_V, 48, 49, 393216)
    a('s_mul_i32 s3, s6, 384')
    a('s_add_u32 s50, s50, s3')
    a('s_addc_u32 s51, s51, 0')
    a(f's_sub_u32 s4, {640*12288}, s3')
    srd(a, S_W, 50, 51, 's4')
    a('s_mul_i32 s3, s7, 163840')
    a('s_add_u32 s44, s44, s3')
    a('s_addc_u32 s45, s45, 0')
    srd(a, S_X, 44, 45, 163840)
    srd(a, S_O, 54, 55, PBYTES)
    a(f's_mul_i32 s3, s{S_HP}, {384*1280}')
    a('s_add_u32 s100, s100, s3')
    a('s_addc_u32 s101, s101, 0')
    srd(a, S_DBG, 52, 53, 256)
    a(f's_add_u32 s3, s54, {FLAG_OFF}')
    a('s_addc_u32 s4, s55, 0')
    srd(a, S_F, 3, 4, 256*256)
    c = (192 ** -0.5) * math.log2(math.e)
    import struct
    a(f's_mov_b32 s{S_C}, 0x{struct.unpack("<I", struct.pack("<f", c))[0]:08x}')

    def ops_W(i):
        g = []
        for cb in range(3):
            g.append(([f's_mov_b32 s{S_TMP}, {i*32*12288}'] if cb == 0 else []) +
                     [f's_add_u32 m0, s{S_WM0}, {(i % 5)*WCH + cb*1024 - cb*128}', 's_nop 0',
                      f'buffer_load_dwordx4 v{V_WS}, s[{S_W}:{S_W+3}], s{S_TMP} offen offset:{cb*128} lds'])
        return g
    def ops_X(c):
        g = []
        for j in range(2):
            so = f's{S_X2}'
            g.append([f's_add_u32 m0, s{S_XM0}, {(c % 2)*16384 + j*1024 - c*128}', 's_nop 0',
                      f'buffer_load_dwordx4 v{V_XS if j % 2 == 0 else V_XB}, s[{S_X}:{S_X+3}], {so} offen offset:{c*128} lds'])
        return g

    EORD = [('K', 0), ('K', 1), ('V', 0), ('K', 2), ('V', 1), ('V', 2)]
    def early(n):
        ty, b = EORD[n // 3]
        cb = n % 3
        a(f's_mov_b32 s{S_TMP2}, {b*BLK}')
        v, sd = (V_KA, S_K) if ty == 'K' else (V_VS, S_V)
        a(f'buffer_load_dwordx4 {vr(V_E + 4*n, 4)}, v{v}, s[{sd}:{sd+3}], s{S_TMP2} offen offset:{cb*128} {kv_flags}')

    def dma_ops(ty, slot):
        v, sd, so, base = (V_KA, S_K, S_KOFF, 0) if ty == 'K' else (V_VS, S_V, S_VOFF, VB)
        g = []
        for cb in range(3):
            x = [f's_add_u32 m0, s{S_M0B}, {base + slot*BLK + cb*1024 - cb*128}', 's_nop 0',
                 f'buffer_load_dwordx4 v{v}, s[{sd}:{sd+3}], s{so} offen offset:{cb*128} {kv_flags} lds']
            if cb == 2:
                x.append(f's_add_u32 s{so}, s{so}, {BLK}')
            g.append(x)
        return g

    def pipeline(n, rd, per, mm, depth, NFB=NFB):
        for i in range(min(depth, n)):
            rd(i, i % NFB)
        for i in range(n):
            issued = min(n, i + depth)
            a(f's_waitcnt lgkmcnt({(issued - i - 1) * per})')
            mm(i, i % NFB)
            if i + depth < n:
                rd(i + depth, (i + depth) % NFB)

    a(f's_mov_b32 s{S_KOFF}, {3*BLK}')
    a(f's_mov_b32 s{S_VOFF}, {3*BLK}')
    a(f's_mul_i32 s{S_X2}, s{S_QD}, 20480')
    def qproj(sched):
        q = []; lq = []; bufof = {}
        ne = [0]; fb = [0]
        def put(g, tag):
            for x in g: a(x)
            q.append(tag)
        def ex(k):
            for _ in range(sched.get(k, 0)):
                early(ne[0]); ne[0] += 1; q.append('e')
        a(f's_cmp_eq_u32 s{S_W8}, 0')
        a(f's_cselect_b32 s{S_RET}, 0, s{S_OOB}')
        a(f's_lshl_b32 s3, s{S_PID}, 8')
        a(f's_add_u32 s3, s3, s{S_RET}')
        a('v_mov_b32 v48, 0')
        a('v_lshlrev_b32 v49, 2, v0')
        put([f'buffer_store_dword v48, v49, s[{S_F}:{S_F+3}], s3 offen sc0 sc1'], 'c')
        for nm, g in [('w0', ops_W(0)), ('x0', ops_X(0)), ('w1', ops_W(1)), ('w2', ops_W(2)), ('x1', ops_X(1)), ('w3', ops_W(3)), ('w4', ops_W(4))]:
            for x in g: put(x, nm)
        ex(-1)
        for i in range(96):
            a(f'v_mov_b32 v{V_O+i}, 0')
        def room(k):
            if len(lq) + k > 15:
                a(f's_waitcnt lgkmcnt({15 - k})')
                del lq[:len(lq) - (15 - k)]
        def rd(i, n):
            buf = fb[0] % 9; fb[0] += 1; bufof[(i, n)] = buf
            s, j = n // 6, n % 6
            room(2)
            hi = (i % 5) >= 2
            for t in range(2):
                off = ((i % 5) - 2*hi)*WCH + s*6144 + t*512 + (j//2)*1024
                a(f'ds_read_b64_tr_b16 {vr(V_QF+4*buf+2*t,2)}, v{V_WR + j % 2 + 2*hi} offset:{off}')
                lq.append((i, n))
        def mm(i, n):
            if (i, n) in lq:
                last = max(k for k, t in enumerate(lq) if t == (i, n))
                a(f's_waitcnt lgkmcnt({len(lq) - 1 - last})')
                del lq[:last+1]
            s, j = n // 6, n % 6
            a(f'v_mfma_f32_32x32x16_bf16 {vr(V_O+16*j,16)}, {vr(V_QF+4*bufof[(i,n)],4)}, {vr(V_Q+16*((i//2)%2)+4*(2*(i%2)+s),4)}, {vr(V_O+16*j,16)}')
        for i in range(20):
            last = max(k for k, t in enumerate(q) if t in (f'w{i}', f'x{i//2}'))
            a(f's_waitcnt vmcnt({len(q) - 1 - last}) lgkmcnt(0)')
            lq.clear()
            a('s_barrier')
            if i in (0, 10): stamp()
            if i == 0:
                put(['s_mov_b64 exec, 1', 'v_mov_b32 v159, 1',
                     f'buffer_atomic_add v159, off, s[{S_DBG}:{S_DBG+3}], s{S_RET} offset:252 sc1', 's_mov_b64 exec, -1', 's_nop 1'], 'a')
            if i % 2 == 0:
                for s in range(4):
                    a(f'ds_read_b128 {vr(V_Q+16*((i//2)%2)+4*s,4)}, v{V_XR+s} offset:{((i//2) % 2)*16384}')
                    lq.append(('x', s))
            pend = []
            if i >= 1 and i + 4 < 20:
                pend += [(x, f'w{i+4}') for x in ops_W(i + 4)]
            if i % 2 == 1 and i//2 + 2 < 10:
                pend += [(x, f'x{i//2+2}') for x in ops_X(i//2 + 2)]
            nr = 3 if i else 5
            for n in range(nr): rd(i, n)
            if i:
                for n in range(8, 12):
                    mm(i - 1, n)
                    rd(i, nr); nr += 1
                    if pend: put(*pend.pop(0))
            for n in range(8):
                mm(i, n)
                if nr < 12:
                    rd(i, nr); nr += 1
                if pend: put(*pend.pop(0))
                if n == 4: ex(i)
            assert nr == 12
        for n in range(8, 12): mm(19, n)
        assert ne[0] == 18
        a('s_barrier')
    s1 = {int(k): v for k, v in opt.get('sched1', {str(k): 1 for k in range(18)}).items()}
    qproj(s1)
    exec(open('loop.inc').read(), globals(), locals())
    T = V_T
    exec(open('tail.inc').read(), globals(), locals())
```

```python
import sys, json
sys.path.insert(0, 'gen')
from common import *
import k1
NAME = 'concat_heads__mha_block_cached__mha_block_cached__near_ridge'
def build(opt, out):
    a = Asm()
    a.raw('; @launch grid=(256,1,1) block=(512,1,1) lds=163840')
    a.raw('.amdgcn_target "amdgcn-amd-amdhsa--gfx950"')
    a.raw('.text')
    k1.gen_k1(a, NAME + '_kernel', opt)
    a.raw('.section .rodata,"a"')
    a.raw(kernel_desc(NAME + '_kernel', 256))
    open(out, 'w').write(a.text())
if __name__ == '__main__':
    opt = {'kv_flags': 'nt'}
    opt.update(json.loads(sys.argv[1]) if len(sys.argv) > 1 else {})
    out = sys.argv[2] if len(sys.argv) > 2 else f'cdna_kernels/{NAME}.s'
    build(opt, out)
```
